```python
import torch

def _softmax(x, axis=-1):
    return torch.softmax(x, dim=axis)
def _gelu(x):
    return torch.nn.functional.gelu(x, approximate="tanh")
def _silu(x):
    return torch.nn.functional.silu(x)
def _sigmoid(x):
    return torch.sigmoid(x)
def _layernorm(x, axis=-1, eps=1e-5):
    m = x.mean(dim=axis, keepdim=True)
    v = x.var(dim=axis, keepdim=True, unbiased=False)
    return (x - m) / torch.sqrt(v + eps)
def _scatter_add(tgt, idx, src, axis=0):
    return tgt.clone().index_add_(axis, idx, src)
def _segment_sum(src, seg, n):
    out = torch.zeros((n,) + src.shape[1:], dtype=src.dtype)
    return out.index_add_(0, seg, src)
def _pad(x, pw):
    flat = tuple(v for pair in reversed(pw) for v in pair)
    return torch.nn.functional.pad(x, flat)

kernel_name = 'gated_mix__ssm_conv_s5__glu_gated_swiglu__prompt'

def setup_inputs():

    _w = (lambda a: (lambda t: t.to(torch.bfloat16) if t.is_floating_point() else t)(torch.as_tensor(a)))
    def _A_setup():
        B, S, D = 1, 2048, 1024
        P = D
        Lambda_re = -0.5 * (lambda _x: torch.exp(torch.as_tensor(_x)))((lambda *s: torch.randn(*s, dtype=torch.bfloat16) * 0.2)(P))
        Lambda_im = (lambda *s: torch.randn(*s, dtype=torch.bfloat16) * 0.4)(P) * 1.0
        B_re = (lambda *s: torch.randn(*s, dtype=torch.bfloat16) * 0.2)(P, D) * (D ** -0.5)
        B_im = (lambda *s: torch.randn(*s, dtype=torch.bfloat16) * 0.2)(P, D) * (D ** -0.5)
        C_re = (lambda *s: torch.randn(*s, dtype=torch.bfloat16) * 0.2)(D, P) * (P ** -0.5)
        C_im = (lambda *s: torch.randn(*s, dtype=torch.bfloat16) * 0.2)(D, P) * (P ** -0.5)
        log_dt = (lambda *s: torch.randn(*s, dtype=torch.bfloat16) * 0.2)(P) * 0.3 - 2.0
        Dskip = (lambda *s: torch.randn(*s, dtype=torch.bfloat16) * 0.05)(D)
        return {
            "x": _w((lambda *s: torch.randn(*s, dtype=torch.bfloat16) * 0.05)(B, S, D)),
            "Lambda_re": _w(Lambda_re),
            "Lambda_im": _w(Lambda_im),
            "B_re": _w(B_re),
            "B_im": _w(B_im),
            "C_re": _w(C_re),
            "C_im": _w(C_im),
            "log_dt": _w(log_dt),
            "Dskip": _w(Dskip),
        }
    _A_in = _A_setup()

    def _B_setup():
        B, S, D, F = 1, 2048, 1024, 3584
        return {
            "x": _w((lambda *s: torch.randn(*s, dtype=torch.bfloat16) * 0.05)(B, S, D)),
            "w1": _w((lambda *s: torch.randn(*s, dtype=torch.bfloat16) * 0.8)(D, F) * (2.0 / D) ** 0.5),
            "w3": _w((lambda *s: torch.randn(*s, dtype=torch.bfloat16) * 0.8)(D, F) * (2.0 / D) ** 0.5),
            "w2": _w((lambda *s: torch.randn(*s, dtype=torch.bfloat16) * 0.8)(F, D) * (2.0 / F) ** 0.5),
        }
    _B_in = _B_setup()

    return {
        "A_x": _A_in["x"],
        "A_Lambda_re": _A_in["Lambda_re"],
        "A_Lambda_im": _A_in["Lambda_im"],
        "A_B_re": _A_in["B_re"],
        "A_B_im": _A_in["B_im"],
        "A_C_re": _A_in["C_re"],
        "A_C_im": _A_in["C_im"],
        "A_log_dt": _A_in["log_dt"],
        "A_Dskip": _A_in["Dskip"],
        "B_x": _B_in["x"],
        "B_w1": _B_in["w1"],
        "B_w3": _B_in["w3"],
        "B_w2": _B_in["w2"],
        "gate_w": _w((lambda *s: torch.randn(*s, dtype=torch.bfloat16) * 0.05)(1024) * 16.0),
    }

def reference(A_x, A_Lambda_re, A_Lambda_im, A_B_re, A_B_im, A_C_re, A_C_im, A_log_dt, A_Dskip, B_x, B_w1, B_w3, B_w2, gate_w):
    def _A_ref(x, Lambda_re, Lambda_im, B_re, B_im, C_re, C_im, log_dt, Dskip):
        Bsz, L, H = x.shape
        Lam = Lambda_re + 1j * Lambda_im
        Bmat = B_re + 1j * B_im
        Cmat = C_re + 1j * C_im
        dt = torch.exp(log_dt)
        Lam_bar = torch.exp(dt * Lam)
        B_bar = ((Lam_bar - 1.0) / Lam)[:, None] * Bmat
        Bu = torch.einsum("bld,pd->blp", x + 0j, B_bar)
        h = torch.zeros_like(Bu[:, 0, :])
        hs = []
        for t in range(L):
            h = Lam_bar[None, :] * h + Bu[:, t, :]
            hs.append(h)
        hseq = torch.stack(hs, 1)
        y = 2.0 * torch.einsum("blp,dp->bld", hseq, Cmat).real + x * Dskip[None, None, :]
        return y

    def _B_ref(x, w1, w3, w2):
        gate = torch.einsum("bsd,df->bsf", x, w1)
        up = torch.einsum("bsd,df->bsf", x, w3)
        h = _silu(gate) * up
        out = torch.einsum("bsf,fd->bsd", h, w2)
        return out

    x = A_x
    g = _sigmoid((x * gate_w).sum(-1, keepdims=True))
    a = _A_ref(x, A_Lambda_re, A_Lambda_im, A_B_re, A_B_im, A_C_re, A_C_im, A_log_dt, A_Dskip)
    b = _B_ref(x, B_w1, B_w3, B_w2)
    return g * a + (1 - g) * b
```

```python
import sys

OUT = []
def e(s=""):
    if OUT and " lds" in s and s.strip().startswith("buffer_load") and " m0," in OUT[-1]:
        OUT.append("  s_nop 0")
    OUT.append(s)

class Lbl:
    n = 0
    @staticmethod
    def new(p="L"):
        Lbl.n += 1
        return f"{p}_{Lbl.n}"

WS_HMID = 0x0;        SZ_HMID = 2048*3584*2
WS_HHI  = 0x1000000;  SZ_H = 2048*2048*2
WS_HLO  = 0x1800000
WS_T    = 0x2000000;  SZ_T = 2048*1024*2
WS_G    = 0x2400000;  SZ_G = 2048*4
WS_AGG  = 0x2410000;  SZ_AGG = 16*512*16

P_X, P_LRE, P_LIM, P_BRE, P_BIM, P_CRE, P_CIM, P_LDT = 4, 6, 8, 10, 12, 14, 16, 18
P_DSK, P_BX, P_W1, P_W3, P_W2, P_GW, P_OUT, P_DBG = 20, 22, 24, 26, 28, 30, 32, 34
P_WS = 36

def srd(d, p, nbytes, off=0):
    if off:
        e(f"  s_add_u32 s{d}, s{p}, 0x{off:x}")
        e(f"  s_addc_u32 s{d+1}, s{p+1}, 0")
    else:
        e(f"  s_mov_b32 s{d}, s{p}")
        e(f"  s_mov_b32 s{d+1}, s{p+1}")
    e(f"  s_mov_b32 s{d+2}, 0x{nbytes:x}")
    e(f"  s_mov_b32 s{d+3}, 0x00020000")

def load_ptrs():
    e("  s_load_dwordx16 s[4:19], s[0:1], 0")
    e("  s_load_dwordx16 s[20:35], s[0:1], 64")
    e("  s_load_dwordx2 s[36:37], s[0:1], 128")

def vr(b, n=4): return f"v[{b}:{b+n-1}]"
def ar(b, n=4): return f"a[{b}:{b+n-1}]"

def interleave(mfmas, fillers, frac=0.8):
    M = len(mfmas); F = len(fillers)
    span = max(1, int(M*frac))
    done = 0
    for i, m in enumerate(mfmas):
        e("  " + m)
        want = min(F, ((i+1)*F + span - 1)//span)
        while done < want:
            f = fillers[done]; done += 1
            if isinstance(f, str): e("  " + f)
            else:
                for x in f: e("  " + x)
    while done < F:
        f = fillers[done]; done += 1
        if isinstance(f, str): e("  " + f)
        else:
            for x in f: e("  " + x)

def bf16_round(dst, src, tmp):
    e(f"  v_cvt_pk_bf16_f32 v{tmp}, v{src}, v{src}")
    e(f"  v_lshlrev_b32 v{dst}, 16, v{tmp}")

def kernel1():
    K = "gm_phase1_kernel"
    e(f".globl {K}\n.p2align 8\n.type {K},@function\n{K}:")
    Lend = "K1_end"
    e("  s_cmp_ge_u32 s2, 256")
    e(f"  s_cbranch_scc1 {Lend}")
    load_ptrs()
    e("  v_and_b32 v1, 63, v0")
    e("  v_lshrrev_b32 v2, 6, v0")
    e("  s_nop 0")
    e("  v_readfirstlane_b32 s56, v2")
    e("  v_and_b32 v3, 15, v1")
    e("  v_lshrrev_b32 v4, 4, v1")
    e("  s_waitcnt lgkmcnt(0)")
    e("  s_lshr_b32 s57, s2, 3")
    e("  s_and_b32 s57, s57, 7")
    e("  s_and_b32 s58, s2, 7")
    e("  s_lshl_b32 s58, s58, 2")
    e("  s_lshr_b32 s59, s2, 6")
    e("  s_add_u32 s58, s58, s59")
    srd(40, P_X, 2048*2048)
    e("  s_cmp_lt_u32 s56, 2")
    e(f"  s_cselect_b32 s44, s{P_W1}, s{P_W3}")
    e(f"  s_cselect_b32 s45, s{P_W1+1}, s{P_W3+1}")
    e(f"  s_mov_b32 s46, 0x{1024*7168:x}")
    e("  s_mov_b32 s47, 0x00020000")
    srd(48, P_GW, 2048)
    e("  s_lshl_b32 s60, s2, 3")
    e("  s_lshl_b32 s61, s56, 1")
    e("  s_add_u32 s60, s60, s61")
    e("  s_lshl_b32 s61, s60, 11")
    e("  v_lshlrev_b32 v5, 5, v1")
    e("  buffer_load_dwordx4 v[8:11], v5, s[48:51], 0 offen")
    e("  buffer_load_dwordx4 v[12:15], v5, s[48:51], 0 offen offset:16")
    e("  buffer_load_dwordx4 v[16:19], v5, s[40:43], s61 offen")
    e("  buffer_load_dwordx4 v[20:23], v5, s[40:43], s61 offen offset:16")
    e("  buffer_load_dwordx4 v[24:27], v5, s[40:43], s61 offen offset:2048")
    e("  buffer_load_dwordx4 v[28:31], v5, s[40:43], s61 offen offset:2064")

    NBUF = 5; STG = 30720; D = 8
    V_DA = 100
    V_DW = 104
    V_RA = 108; V_RW = 109
    GACC = 128
    UACC = 0
    FR = 112
    e("  s_lshl_b32 s73, s57, 19")
    for j in range(4):
        e(f"  s_lshl_b32 s74, s56, 8")
        e(f"  s_add_u32 s74, s74, {j*64}")
        e(f"  v_add_u32 v32, s74, v1")
        e(f"  v_lshrrev_b32 v33, 2, v32")
        e(f"  v_and_b32 v34, 3, v32")
        e(f"  v_bfe_u32 v35, v33, 3, 1")
        e(f"  v_mul_u32_u24 v35, 3, v35")
        e(f"  v_xor_b32 v34, v34, v35")
        e(f"  v_lshlrev_b32 v33, 11, v33")
        e(f"  v_lshl_add_u32 v33, v34, 4, v33")
        e(f"  v_add_u32 v{V_DA+j}, s73, v33")
    e("  s_mul_i32 s75, s58, 224")
    e("  s_and_b32 s76, s56, 1")
    e("  s_lshl_b32 s76, s76, 2")
    e("  s_lshr_b32 s77, s56, 1")
    e("  s_mul_i32 s77, s77, 7168")
    e("  s_add_u32 s77, s77, 16384")
    for j in range(4):
        e(f"  s_add_u32 s74, s76, {j}")
        e(f"  s_min_u32 s74, s74, 6")
        e(f"  s_lshl_b32 s78, s74, 10")
        e(f"  s_add_u32 s{66+j}, s78, s77")
        e(f"  s_lshl_b32 s74, s74, 6")
        e(f"  v_add_u32 v32, s74, v1")
        e(f"  v_mul_u32_u24 v33, 4682, v32")
        e(f"  v_lshrrev_b32 v33, 16, v33")
        e(f"  v_mul_u32_u24 v34, 14, v33")
        e(f"  v_sub_u32 v34, v32, v34")
        e(f"  v_and_b32 v35, 0x13, v33")
        e(f"  v_bfe_u32 v36, v33, 2, 1")
        e(f"  v_lshl_or_b32 v35, v36, 3, v35")
        e(f"  v_bfe_u32 v36, v33, 3, 1")
        e(f"  v_lshl_or_b32 v35, v36, 2, v35")
        e(f"  v_mul_u32_u24 v35, 7168, v35")
        e(f"  v_lshl_add_u32 v35, v34, 4, v35")
        e(f"  v_add_u32 v{V_DW+j}, s75, v35")
    e("  s_lshl_b32 s70, s56, 12")
    e("  v_bfe_u32 v32, v1, 3, 1")
    e("  v_mul_u32_u24 v32, 3, v32")
    e("  v_xor_b32 v32, v32, v4")
    e("  v_lshlrev_b32 v32, 4, v32")
    e("  v_lshl_add_u32 v32, v3, 6, v32")
    e(f"  v_add_u32 v{V_RA}, s70, v32")
    e("  v_bfe_u32 v32, v1, 5, 1")
    e("  v_lshlrev_b32 v32, 4, v32")
    e("  v_bfe_u32 v33, v1, 4, 1")
    e("  v_lshl_add_u32 v32, v33, 2, v32")
    e("  v_bfe_u32 v33, v1, 2, 2")
    e("  v_add_u32 v32, v32, v33")
    e("  v_mul_u32_u24 v32, 224, v32")
    e("  v_and_b32 v33, 3, v1")
    e("  v_lshl_add_u32 v32, v33, 3, v32")
    e(f"  v_add_u32 v{V_RW}, 16384, v32")
    e("  s_mov_b32 s62, 0")
    e("  s_mov_b32 s63, 0")
    e("  s_mov_b32 s64, 0")
    e("  s_mov_b32 s65, 0")
    e("  s_mov_b32 s71, 0")

    def dma_stage():
        f = []
        for j in range(4):
            f.append([f"s_add_u32 s79, s62, s70", f"s_add_u32 m0, s79, {j*1024}"] if j == 0 else [f"s_add_u32 m0, s79, {j*1024}"])
            f.append(f"buffer_load_dwordx4 v{V_DA+j}, s[40:43], s63 offen lds")
        for j in range(4):
            f.append(f"s_add_u32 m0, s62, s{66+j}")
            f.append(f"buffer_load_dwordx4 v{V_DW+j}, s[44:47], s64 offen lds")
        f.append(["s_add_u32 s63, s63, 64", f"s_add_u32 s64, s64, {32*7168}", "s_add_u32 s65, s65, 1"])
        f.append([f"s_add_u32 s62, s62, {STG}", f"s_cmp_ge_u32 s62, {NBUF*STG}", "s_cselect_b32 s62, 0, s62"])
        f.append(["s_cmp_ge_u32 s65, 32", "s_cselect_b32 s42, 0, s42", "s_cselect_b32 s46, 0, s46"])
        return f
    def flat(fl):
        for f in fl:
            if isinstance(f, str): e("  " + f)
            else:
                for x in f: e("  " + x)
    def flat_dma(fl):
        for f in fl:
            if isinstance(f, str):
                e("  " + f)
            else:
                for x in f: e("  " + x)

    for s in range(NBUF):
        flat_dma(dma_stage())
    for i in range(112):
        e(f"  v_mov_b32 v{GACC+i}, 0")
        e(f"  v_accvgpr_write_b32 a{UACC+i}, 0")

    e("  s_waitcnt vmcnt(40)")
    for row in range(2):
        e(f"  v_mov_b32 v{40+row}, 0")
        for d in range(8):
            xv = 16 + row*8 + d; gv = 8 + d
            e(f"  v_lshlrev_b32 v32, 16, v{xv}")
            e(f"  v_lshlrev_b32 v33, 16, v{gv}")
            e(f"  v_and_b32 v34, 0xffff0000, v{xv}")
            e(f"  v_and_b32 v35, 0xffff0000, v{gv}")
            e(f"  v_mul_f32 v32, v32, v33")
            e(f"  v_mul_f32 v34, v34, v35")
            e(f"  v_cvt_pk_bf16_f32 v32, v32, v34")
            e(f"  v_lshlrev_b32 v33, 16, v32")
            e(f"  v_and_b32 v34, 0xffff0000, v32")
            e(f"  v_add_f32 v{40+row}, v{40+row}, v33")
            e(f"  v_add_f32 v{40+row}, v{40+row}, v34")
    for off in (0x041F, 0x081F, 0x101F, 0x201F, 0x401F):
        e(f"  ds_swizzle_b32 v42, v40 offset:0x{off:04X}")
        e(f"  ds_swizzle_b32 v43, v41 offset:0x{off:04X}")
        e("  s_waitcnt lgkmcnt(0)")
        e("  v_add_f32 v40, v40, v42")
        e("  v_add_f32 v41, v41, v43")
    e("  s_nop 1")
    e("  v_readlane_b32 s80, v40, 32")
    e("  v_readlane_b32 s81, v41, 32")
    e("  s_nop 1")
    e("  v_add_f32 v40, s80, v40")
    e("  v_add_f32 v41, s81, v41")
    srd(48, P_WS, SZ_G, WS_G)
    for row in range(2):
        v = 40 + row
        bf16_round(v, v, 32)
        e(f"  v_mul_f32 v33, 0xbfb8aa3b, v{v}")
        e(f"  v_exp_f32 v33, v33")
        e("  s_nop 0")
        e(f"  v_add_f32 v33, 1.0, v33")
        e(f"  v_rcp_f32 v33, v33")
        e("  s_nop 0")
        bf16_round(v, 33, 32)
    e("  s_lshl_b32 s61, s60, 2")
    e("  v_mov_b32 v33, 0")
    e("  s_mov_b64 s[82:83], exec")
    e("  s_mov_b64 exec, 1")
    e("  buffer_store_dword v40, v33, s[48:51], s61 offen")
    e("  buffer_store_dword v41, v33, s[48:51], s61 offen offset:4")
    e("  s_mov_b64 exec, s[82:83]")

    def gfrag_act(st, mt): return FR + st*72 + mt*4
    def gfrag_w(st, nt): return FR + st*72 + 16 + nt*4
    def glu_reads(st):
        r = []
        for mt in range(4):
            r.append(f"ds_read_b128 {ar(gfrag_act(st,mt))}, v{V_RA} offset:{mt*1024}")
        for nt in range(14):
            base = (nt % 7)*32 + (7168 if nt >= 7 else 0)
            b = gfrag_w(st, nt)
            r.append(f"ds_read_b64_tr_b16 {ar(b,2)}, v{V_RW} offset:{base}")
            r.append(f"ds_read_b64_tr_b16 {ar(b+2,2)}, v{V_RW} offset:{base+8*224}")
        return r
    def glu_mfmas(st):
        m = []
        for nt in range(14):
            for mt in range(4):
                if nt < 7: acc = vr(GACC + (nt*4+mt)*4)
                else: acc = ar(UACC + ((nt-7)*4+mt)*4)
                m.append(f"v_mfma_f32_16x16x32_bf16 {acc}, {ar(gfrag_w(st,nt))}, {ar(gfrag_act(st,mt))}, {acc}")
        return m
    def adv_read():
        return [["s_add_u32 s71, s71, 1", f"s_cmp_ge_u32 s71, {NBUF}", f"s_mov_b32 s72, {STG}", f"s_cselect_b32 s72, {-(NBUF-1)*STG & 0xffffffff}, s72", "s_cselect_b32 s71, 0, s71"],
                f"v_add_u32 v{V_RA}, s72, v{V_RA}", f"v_add_u32 v{V_RW}, s72, v{V_RW}"]
    e(f"  s_waitcnt vmcnt({(NBUF-1)*D + 2})")
    e("  s_barrier")
    flat(glu_reads(0))
    e("  s_mov_b32 s84, 0")
    Lloop = Lbl.new("K1_glu")
    e(f"{Lloop}:")
    for half in range(2):
        e(f"  s_waitcnt vmcnt({(NBUF-2)*D}) lgkmcnt(0)")
        e("  s_barrier")
        fl = adv_read() + glu_reads(1-half) + dma_stage()
        interleave(glu_mfmas(half), fl, 0.85)
    e("  s_add_u32 s84, s84, 1")
    e("  s_cmp_lt_u32 s84, 16")
    e(f"  s_cbranch_scc1 {Lloop}")
    e("  s_waitcnt vmcnt(0) lgkmcnt(0)")
    e("  s_barrier")

    NB2 = 4; ST2 = 32768; D2 = 8
    e("  s_lshr_b32 s85, s2, 4")
    e("  s_and_b32 s86, s2, 15")
    e(f"  s_mov_b32 s42, 0x{2048*2048:x}")
    e("  s_cmp_lt_u32 s56, 2")
    e(f"  s_cselect_b32 s44, s{P_BRE}, s{P_BIM}")
    e(f"  s_cselect_b32 s45, s{P_BRE+1}, s{P_BIM+1}")
    e(f"  s_mov_b32 s46, 0x{1024*2048:x}")
    e("  s_lshl_b32 s73, s85, 18")
    e("  s_lshl_b32 s75, s86, 17")
    for j in range(4):
        e(f"  s_lshl_b32 s74, s56, 8")
        e(f"  s_add_u32 s74, s74, {j*64}")
        e(f"  v_add_u32 v32, s74, v1")
        e(f"  v_lshrrev_b32 v33, 3, v32")
        e(f"  v_and_b32 v34, 7, v32")
        e(f"  v_and_b32 v35, 7, v33")
        e(f"  v_xor_b32 v34, v34, v35")
        e(f"  v_lshlrev_b32 v34, 4, v34")
        e(f"  v_lshl_add_u32 v35, v33, 11, v34")
        e(f"  v_add_u32 v{V_DA+j}, s73, v35")
        e(f"  v_and_b32 v33, 63, v33")
        e(f"  v_lshl_add_u32 v35, v33, 11, v34")
        e(f"  v_add_u32 v{V_DW+j}, s75, v35")
    e("  s_mov_b32 s62, 0")
    e("  s_mov_b32 s63, 0")
    e("  s_mov_b32 s65, 0")
    e("  s_mov_b32 s71, 0")
    def dma2():
        f = []
        for j in range(4):
            f.append([f"s_add_u32 s79, s62, s70", f"s_add_u32 m0, s79, {j*1024}"] if j == 0 else [f"s_add_u32 m0, s79, {j*1024}"])
            f.append(f"buffer_load_dwordx4 v{V_DA+j}, s[40:43], s63 offen lds")
        for j in range(4):
            f.append(f"s_add_u32 m0, s79, {16384+j*1024}")
            f.append(f"buffer_load_dwordx4 v{V_DW+j}, s[44:47], s63 offen lds")
        f.append(["s_add_u32 s63, s63, 128", "s_add_u32 s65, s65, 1"])
        f.append([f"s_add_u32 s62, s62, {ST2}", f"s_cmp_ge_u32 s62, {NB2*ST2}", "s_cselect_b32 s62, 0, s62"])
        f.append(["s_cmp_ge_u32 s65, 16", "s_cselect_b32 s42, 0, s42", "s_cselect_b32 s46, 0, s46"])
        return f
    for s in range(NB2):
        flat_dma(dma2())

    srd(48, P_WS, SZ_HMID, WS_HMID)
    e("  s_lshl_b32 s74, s57, 8")
    e("  s_lshl_b32 s77, s56, 6")
    e("  s_add_u32 s74, s74, s77")
    e("  v_add_u32 v32, s74, v3")
    e("  v_mul_u32_u24 v32, 7168, v32")
    e("  s_mul_i32 s74, s58, 224")
    e("  v_lshl_add_u32 v32, v4, 3, v32")
    e("  v_add_u32 v110, s74, v32")
    e("  s_mov_b32 s74, 0xbfb8aa3b")
    for mt in range(4):
        if mt: e(f"  v_add_u32 v110, {16*7168}, v110")
        for nt in range(7):
            g = GACC + (nt*4+mt)*4; u = UACC + (nt*4+mt)*4
            e(f"  v_cvt_pk_bf16_f32 v32, v{g}, v{g+1}")
            e(f"  v_cvt_pk_bf16_f32 v33, v{g+2}, v{g+3}")
            for i, (src, hi) in enumerate(((32,0),(32,1),(33,0),(33,1))):
                if hi: e(f"  v_and_b32 v{34+i}, 0xffff0000, v{src}")
                else:  e(f"  v_lshlrev_b32 v{34+i}, 16, v{src}")
            for i in range(4): e(f"  v_mul_f32 v{38+i}, s74, v{34+i}")
            for i in range(4): e(f"  v_exp_f32 v{38+i}, v{38+i}")
            for i in range(4): e(f"  v_accvgpr_read_b32 v{46+i}, a{u+i}")
            for i in range(4): e(f"  v_add_f32 v{38+i}, 1.0, v{38+i}")
            for i in range(4): e(f"  v_rcp_f32 v{38+i}, v{38+i}")
            e(f"  v_cvt_pk_bf16_f32 v44, v46, v47")
            e(f"  v_cvt_pk_bf16_f32 v45, v48, v49")
            for i in range(4): e(f"  v_mul_f32 v{38+i}, v{34+i}, v{38+i}")
            e(f"  v_cvt_pk_bf16_f32 v42, v38, v39")
            e(f"  v_cvt_pk_bf16_f32 v43, v40, v41")
            for i, (src, hi) in enumerate(((42,0),(42,1),(43,0),(43,1))):
                if hi: e(f"  v_and_b32 v{34+i}, 0xffff0000, v{src}")
                else:  e(f"  v_lshlrev_b32 v{34+i}, 16, v{src}")
            for i, (src, hi) in enumerate(((44,0),(44,1),(45,0),(45,1))):
                if hi: e(f"  v_and_b32 v{38+i}, 0xffff0000, v{src}")
                else:  e(f"  v_lshlrev_b32 v{38+i}, 16, v{src}")
            for i in range(4): e(f"  v_mul_f32 v{34+i}, v{34+i}, v{38+i}")
            t = 50 + ((mt*7+nt) % 4)*2
            e(f"  v_cvt_pk_bf16_f32 v{t}, v34, v35")
            e(f"  v_cvt_pk_bf16_f32 v{t+1}, v36, v37")
            e(f"  buffer_store_dwordx2 {vr(t,2)}, v110, s[48:51], 0 offen offset:{nt*32}")

    SACC = 128; SFR = 192
    V_RA0, V_RA1, V_RW0, V_RW1 = 108, 109, 111, 112
    e("  s_lshr_b32 s87, s56, 1")
    e("  s_and_b32 s88, s56, 1")
    e("  v_and_b32 v32, 7, v1")
    e("  v_xor_b32 v32, v32, v4")
    e("  v_lshlrev_b32 v32, 4, v32")
    e("  v_lshl_add_u32 v32, v3, 7, v32")
    e("  s_lshl_b32 s74, s87, 13")
    e(f"  v_add_u32 v{V_RA0}, s74, v32")
    e(f"  v_xor_b32 v{V_RA1}, 64, v{V_RA0}")
    e("  s_lshl_b32 s74, s88, 12")
    e("  s_add_u32 s74, s74, 16384")
    e(f"  v_add_u32 v{V_RW0}, s74, v32")
    e(f"  v_xor_b32 v{V_RW1}, 64, v{V_RW0}")
    for i in range(64): e(f"  v_mov_b32 v{SACC+i}, 0")
    def s_reads(st, u):
        va = V_RA1 if u else V_RA0; vw = V_RW1 if u else V_RW0
        b = SFR + st*32
        r = [f"ds_read_b128 {vr(b+mt*4)}, v{va} offset:{mt*2048}" for mt in range(4)]
        for p in range(2):
            for j in range(2):
                r.append(f"ds_read_b128 {vr(b+16+(p*2+j)*4)}, v{vw} offset:{p*8192+j*2048}")
        return r
    def s_mfmas(st):
        b = SFR + st*32
        m = []
        for p in range(2):
            for j in range(2):
                for mt in range(4):
                    acc = vr(SACC + p*32 + (j*4+mt)*4)
                    m.append(f"v_mfma_f32_16x16x32_bf16 {acc}, {vr(b+16+(p*2+j)*4)}, {vr(b+mt*4)}, {acc}")
        return m
    def adv2():
        return [["s_add_u32 s71, s71, 1", f"s_cmp_ge_u32 s71, {NB2}", f"s_mov_b32 s72, {ST2}", f"s_cselect_b32 s72, {-(NB2-1)*ST2 & 0xffffffff}, s72", "s_cselect_b32 s71, 0, s71"]] + \
               [f"v_add_u32 v{x}, s72, v{x}" for x in (V_RA0, V_RA1, V_RW0, V_RW1)]
    e(f"  s_waitcnt vmcnt({min(63,(NB2-1)*D2 + 28)})")
    e("  s_barrier")
    flat(s_reads(0, 0))
    e("  s_mov_b32 s84, 0")
    Ll2 = Lbl.new("K1_ssm")
    e(f"{Ll2}:")
    e("  s_waitcnt lgkmcnt(0)")
    interleave(s_mfmas(0), s_reads(1, 1), 0.7)
    e(f"  s_waitcnt vmcnt({(NB2-2)*D2}) lgkmcnt(0)")
    e("  s_barrier")
    interleave(s_mfmas(1), adv2() + s_reads(0, 0) + dma2(), 0.9)
    e("  s_add_u32 s84, s84, 1")
    e("  s_cmp_lt_u32 s84, 16")
    e(f"  s_cbranch_scc1 {Ll2}")
    e("  s_waitcnt vmcnt(0) lgkmcnt(0)")
    e("  s_barrier")

    UST = 528; EOFF = 69632
    e("  s_lshl_b32 s74, s87, 6")
    e("  v_add_u32 v32, s74, v3")
    e(f"  v_mul_u32_u24 v32, {UST}, v32")
    e("  s_lshl_b32 s74, s88, 7")
    e("  v_lshl_add_u32 v32, v4, 4, v32")
    e("  v_add_u32 v32, s74, v32")
    for p in range(2):
        for j in range(2):
            for mt in range(4):
                e(f"  ds_write_b128 v32, {vr(SACC + p*32 + (j*4+mt)*4)} offset:{mt*16*UST + j*64 + p*256}")
    e("  v_and_b32 v33, 31, v1")
    e("  v_lshrrev_b32 v34, 5, v1")
    e("  s_lshl_b32 s74, s56, 1")
    e("  v_add_u32 v34, s74, v34")
    e("  s_lshl_b32 s74, s86, 7")
    e("  v_lshlrev_b32 v35, 2, v33")
    e("  v_add_u32 v35, s74, v35")
    srd(48, P_LRE, 2048)
    e("  buffer_load_dword v36, v35, s[48:51], 0 offen")
    srd(52, P_LIM, 2048)
    e("  buffer_load_dword v37, v35, s[52:55], 0 offen")
    srd(48, P_LDT, 2048)
    e("  buffer_load_dword v38, v35, s[48:51], 0 offen")
    e("  s_waitcnt vmcnt(0) lgkmcnt(0)")
    e("  s_barrier")
    e(f"  v_lshlrev_b32 v39, 4, v34")
    e(f"  v_mul_u32_u24 v39, {UST}, v39")
    e("  v_lshl_add_u32 v39, v33, 3, v39")
    for i in range(16):
        e(f"  ds_read_b64 v[{64+4*i}:{65+4*i}], v39 offset:{i*UST}")
        e(f"  ds_read_b64 v[{66+4*i}:{67+4*i}], v39 offset:{i*UST+256}")
    for (src, dst) in ((36, 40), (37, 42), (38, 44)):
        e(f"  v_lshlrev_b32 v{dst}, 16, v{src}")
        e(f"  v_and_b32 v{dst+1}, 0xffff0000, v{src}")
    for c in range(2):
        e(f"  v_mul_f32 v{44+c}, 0x3fb8aa3b, v{44+c}")
        e(f"  v_exp_f32 v{44+c}, v{44+c}")
        e("  s_nop 0")
        bf16_round(44+c, 44+c, 32)
        e(f"  v_mul_f32 v46, v{44+c}, v{40+c}")
        e(f"  v_mul_f32 v47, v{44+c}, v{42+c}")
        e(f"  v_mul_f32 v46, 0x3fb8aa3b, v46")
        e(f"  v_exp_f32 v46, v46")
        e(f"  v_mul_f32 v47, 0.15915494, v47")
        e(f"  v_fract_f32 v47, v47")
        e(f"  v_cos_f32 v48, v47")
        e(f"  v_sin_f32 v49, v47")
        e("  s_nop 0")
        e(f"  v_mul_f32 v{50+c}, v46, v48")
        e(f"  v_mul_f32 v{52+c}, v46, v49")
        e(f"  v_mul_f32 v46, v{40+c}, v{40+c}")
        e(f"  v_fmac_f32 v46, v{42+c}, v{42+c}")
        e(f"  v_rcp_f32 v46, v46")
        e(f"  v_add_f32 v47, -1.0, v{50+c}")
        e(f"  v_mul_f32 v48, v47, v{40+c}")
        e(f"  v_fmac_f32 v48, v{52+c}, v{42+c}")
        e(f"  v_mul_f32 v49, v{52+c}, v{40+c}")
        e(f"  v_fma_f32 v49, -v47, v{42+c}, v49")
        e(f"  v_mul_f32 v{54+c}, v48, v46")
        e(f"  v_mul_f32 v{56+c}, v49, v46")
    for c in range(2):
        e(f"  v_xor_b32 v{58+c}, 0x80000000, v{52+c}")
        e(f"  v_xor_b32 v{60+c}, 0x80000000, v{56+c}")
    def cmul(dr, di, ar_, ai, br, bi, nbi, tr):
        e(f"  v_pk_mul_f32 v[{tr}:{tr+1}], v[{ar_}:{ar_+1}], v[{br}:{br+1}]")
        e(f"  v_pk_mul_f32 v[{tr+2}:{tr+3}], v[{ai}:{ai+1}], v[{br}:{br+1}]")
        e(f"  v_pk_fma_f32 v[{tr}:{tr+1}], v[{ai}:{ai+1}], v[{nbi}:{nbi+1}], v[{tr}:{tr+1}]")
        e(f"  v_pk_fma_f32 v[{tr+2}:{tr+3}], v[{ar_}:{ar_+1}], v[{bi}:{bi+1}], v[{tr+2}:{tr+3}]")
        e(f"  v_mov_b32 v{dr}, v{tr}\n  v_mov_b32 v{dr+1}, v{tr+1}\n  v_mov_b32 v{di}, v{tr+2}\n  v_mov_b32 v{di+1}, v{tr+3}")
    def cneg(d, s):
        e(f"  v_xor_b32 v{d}, 0x80000000, v{s}\n  v_xor_b32 v{d+1}, 0x80000000, v{s+1}")
    for k in range(2):
        e(f"  v_mov_b32 v{8+k}, v{50+k}\n  v_mov_b32 v{10+k}, v{52+k}")
    for it in range(4):
        cneg(12, 10); cmul(8, 10, 8, 10, 8, 10, 12, 20)
    cneg(12, 10)
    for k in range(2):
        e(f"  v_mov_b32 v{14+k}, v{8+k}\n  v_mov_b32 v{16+k}, v{10+k}")
    for it in range(3):
        cneg(18, 16); cmul(14, 16, 14, 16, 14, 16, 18, 20)
    cneg(18, 16)
    e("  s_waitcnt lgkmcnt(0)")
    for k in range(4): e(f"  v_mov_b32 v{24+k}, 0")
    def hstep(bur, bui):
        e(f"  v_pk_fma_f32 v[20:21], v[24:25], v[50:51], v[{bur}:{bur+1}]")
        e(f"  v_pk_fma_f32 v[22:23], v[26:27], v[50:51], v[{bui}:{bui+1}]")
        e(f"  v_pk_fma_f32 v[20:21], v[26:27], v[58:59], v[20:21]")
        e(f"  v_pk_fma_f32 v[26:27], v[24:25], v[52:53], v[22:23]")
        e(f"  v_mov_b32 v24, v20\n  v_mov_b32 v25, v21")
    for i in range(16):
        ur = 64+4*i; ui = 66+4*i
        e(f"  v_pk_mul_f32 v[28:29], v[{ur}:{ur+1}], v[54:55]")
        e(f"  v_pk_mul_f32 v[30:31], v[{ui}:{ui+1}], v[54:55]")
        e(f"  v_pk_fma_f32 v[28:29], v[{ui}:{ui+1}], v[60:61], v[28:29]")
        e(f"  v_pk_fma_f32 v[{ui}:{ui+1}], v[{ur}:{ur+1}], v[56:57], v[30:31]")
        e(f"  v_mov_b32 v{ur}, v28\n  v_mov_b32 v{ur+1}, v29")
        hstep(ur, ui)
    e("  v_lshlrev_b32 v39, 9, v34")
    e("  v_lshl_add_u32 v39, v33, 4, v39")
    e(f"  v_add_u32 v39, {EOFF}, v39")
    e(f"  ds_write_b128 v39, v[24:27]")
    e("  s_waitcnt lgkmcnt(0)")
    e("  s_barrier")
    e("  v_lshlrev_b32 v39, 4, v33")
    e(f"  v_add_u32 v39, {EOFF}, v39")
    for i in range(8):
        e(f"  ds_read_b128 v[{192+4*i}:{195+4*i}], v39 offset:{i*512}")
    e("  s_waitcnt lgkmcnt(0)")
    def horner(init_zero):
        if init_zero:
            for k in range(4): e(f"  v_mov_b32 v{24+k}, 0")
        for i in range(8):
            if not init_zero:
                e(f"  v_cmp_eq_u32 vcc, {i}, v34")
                e("  s_nop 1")
                for k in range(4): e(f"  v_cndmask_b32 v{28+k}, v{28+k}, v{24+k}, vcc")
            er = 192+4*i
            e(f"  v_pk_fma_f32 v[20:21], v[24:25], v[8:9], v[{er}:{er+1}]")
            e(f"  v_pk_fma_f32 v[22:23], v[26:27], v[8:9], v[{er+2}:{er+3}]")
            e(f"  v_pk_fma_f32 v[20:21], v[26:27], v[12:13], v[20:21]")
            e(f"  v_pk_fma_f32 v[26:27], v[24:25], v[10:11], v[22:23]")
            e(f"  v_mov_b32 v24, v20\n  v_mov_b32 v25, v21")
    horner(True)
    srd(48, P_WS, SZ_AGG, WS_AGG)
    srd(52, P_DBG, 256)
    e("  s_lshl_b32 s74, s86, 9")
    e("  v_lshl_add_u32 v39, v33, 4, s74")
    e("  s_lshl_b32 s75, s85, 13")
    e("  s_lshl_b32 s76, s86, 2")
    Lnp = Lbl.new("K1_nopub")
    e("  s_cmp_lg_u32 s56, 0")
    e(f"  s_cbranch_scc1 {Lnp}")
    e("  s_mov_b64 s[82:83], exec")
    e("  s_mov_b32 exec_hi, 0")
    e("  buffer_store_dwordx4 v[24:27], v39, s[48:51], s75 offen sc1")
    e("  s_waitcnt vmcnt(0)")
    e("  s_mov_b64 exec, 1")
    e("  s_lshl_b32 s77, 1, s85")
    e("  v_mov_b32 v20, s77")
    e("  v_mov_b32 v21, 0")
    e("  buffer_atomic_or v20, v21, s[52:55], s76 offen sc1")
    e("  s_mov_b64 exec, s[82:83]")
    e(f"{Lnp}:")
    for k in range(4): e(f"  v_mov_b32 v{24+k}, 0")
    Lnw = Lbl.new("K1_nowait"); Lpoll = Lbl.new("K1_poll"); Lgot = Lbl.new("K1_got")
    e("  s_cmp_eq_u32 s85, 0")
    e(f"  s_cbranch_scc1 {Lnw}")
    e("  s_lshl_b32 s77, 1, s85")
    e("  s_sub_u32 s77, s77, 1")
    e("  s_mov_b32 s78, 0")
    e("  v_mov_b32 v21, 0")
    e(f"{Lpoll}:")
    e("  buffer_load_dword v20, v21, s[52:55], s76 offen sc1")
    e("  s_waitcnt vmcnt(0)")
    e("  v_readfirstlane_b32 s79, v20")
    e("  s_add_u32 s78, s78, 1")
    e("  s_and_b32 s79, s79, s77")
    e("  s_cmp_eq_u32 s79, s77")
    e(f"  s_cbranch_scc1 {Lgot}")
    e("  s_cmp_gt_u32 s78, 0x100000")
    e(f"  s_cbranch_scc1 {Lgot}")
    e("  s_sleep 2")
    e(f"  s_branch {Lpoll}")
    e(f"{Lgot}:")
    for i in range(15):
        e(f"  s_mov_b32 s77, {i*8192}")
        e(f"  buffer_load_dwordx4 v[{128+4*i}:{131+4*i}], v39, s[48:51], s77 offen sc1")
    e("  s_waitcnt vmcnt(0)")
    for i in range(15):
        if i:
            e(f"  s_cmp_le_u32 s85, {i}")
            e(f"  s_cbranch_scc1 {Lnw}")
        er = 128+4*i
        e(f"  v_pk_fma_f32 v[20:21], v[24:25], v[14:15], v[{er}:{er+1}]")
        e(f"  v_pk_fma_f32 v[22:23], v[26:27], v[14:15], v[{er+2}:{er+3}]")
        e(f"  v_pk_fma_f32 v[20:21], v[26:27], v[18:19], v[20:21]")
        e(f"  v_pk_fma_f32 v[26:27], v[24:25], v[16:17], v[22:23]")
        e(f"  v_mov_b32 v24, v20\n  v_mov_b32 v25, v21")
    e(f"{Lnw}:")
    horner(False)
    for k in range(4): e(f"  v_mov_b32 v{24+k}, v{28+k}")
    srd(48, P_WS, SZ_H, WS_HHI)
    srd(52, P_WS, SZ_H, WS_HLO)
    e("  s_lshl_b32 s74, s85, 19")
    e("  v_lshlrev_b32 v39, 16, v34")
    e("  v_add3_u32 v39, v39, v35, s74")
    for i in range(16):
        hstep(64+4*i, 66+4*i)
        o = 192 + (i % 4)*4
        e(f"  v_cvt_pk_bf16_f32 v{o}, v24, v25")
        e(f"  v_cvt_pk_bf16_f32 v{o+2}, -v26, -v27")
        e(f"  v_lshlrev_b32 v28, 16, v{o}")
        e(f"  v_and_b32 v29, 0xffff0000, v{o}")
        e(f"  v_lshlrev_b32 v30, 16, v{o+2}")
        e(f"  v_and_b32 v31, 0xffff0000, v{o+2}")
        e(f"  v_sub_f32 v28, v24, v28")
        e(f"  v_sub_f32 v29, v25, v29")
        e(f"  v_sub_f32_e64 v30, -v26, v30")
        e(f"  v_sub_f32_e64 v31, -v27, v31")
        e(f"  v_cvt_pk_bf16_f32 v{o+1}, v28, v29")
        e(f"  v_cvt_pk_bf16_f32 v{o+3}, v30, v31")
        e(f"  s_mov_b32 s74, {i*4096}")
        e(f"  buffer_store_dword v{o}, v39, s[48:51], s74 offen")
        e(f"  buffer_store_dword v{o+2}, v39, s[48:51], s74 offen offset:2048")
        e(f"  buffer_store_dword v{o+1}, v39, s[52:55], s74 offen")
        e(f"  buffer_store_dword v{o+3}, v39, s[52:55], s74 offen offset:2048")
    e(f"{Lend}:")
    e("  s_endpgm")

def kernel2():
    K = "gm_phase2_kernel"
    e(f".globl {K}\n.p2align 8\n.type {K},@function\n{K}:")
    Lend = "K2_end"; LB = "K2_typeB"
    e("  s_cmp_ge_u32 s2, 256")
    e(f"  s_cbranch_scc1 {Lend}")
    load_ptrs()
    e("  v_and_b32 v1, 63, v0")
    e("  v_lshrrev_b32 v2, 6, v0")
    e("  s_nop 0")
    e("  v_readfirstlane_b32 s56, v2")
    e("  v_and_b32 v3, 15, v1")
    e("  v_lshrrev_b32 v4, 4, v1")
    e("  s_and_b32 s60, s2, 127")
    e("  s_and_b32 s61, s60, 7")
    e("  s_lshr_b32 s62, s60, 3")
    e("  s_lshr_b32 s57, s61, 1")
    e("  s_lshl_b32 s57, s57, 2")
    e("  s_lshr_b32 s63, s62, 2")
    e("  s_add_u32 s57, s57, s63")
    e("  s_and_b32 s58, s61, 1")
    e("  s_lshl_b32 s58, s58, 2")
    e("  s_and_b32 s63, s62, 3")
    e("  s_add_u32 s58, s58, s63")
    e("  s_lshr_b32 s87, s56, 1")
    e("  s_and_b32 s88, s56, 1")
    e("  s_lshl_b32 s70, s56, 12")
    e("  s_waitcnt lgkmcnt(0)")
    V_RA0, V_RA1 = 20, 21
    e("  v_and_b32 v32, 7, v1")
    e("  v_xor_b32 v32, v32, v4")
    e("  v_lshlrev_b32 v32, 4, v32")
    e("  v_lshl_add_u32 v32, v3, 7, v32")
    e("  s_lshl_b32 s74, s87, 13")
    e(f"  v_add_u32 v{V_RA0}, s74, v32")
    e(f"  v_xor_b32 v{V_RA1}, 64, v{V_RA0}")
    e("  v_mov_b32 v31, v32")
    ACC = 64; FR = 128
    for i in range(64): e(f"  v_mov_b32 v{ACC+i}, 0")
    e("  s_mov_b32 s62, 0\n  s_mov_b32 s63, 0\n  s_mov_b32 s64, 0\n  s_mov_b32 s65, 0\n  s_mov_b32 s71, 0")
    def flat(fl):
        for f in fl:
            if isinstance(f, str): e("  " + f)
            else:
                for x in f: e("  " + x)
    def flat_dma(fl):
        for f in fl:
            if isinstance(f, str):
                e("  " + f)
            else:
                for x in f: e("  " + x)
    e("  s_cmp_ge_u32 s2, 128")
    e(f"  s_cbranch_scc1 {LB}")

    NB = 4; ST = 32768; D = 8; NST = 56
    V_DA = 8; V_DW = 12; V_RW = 24
    srd(40, P_WS, SZ_HMID, WS_HMID)
    srd(44, P_W2, 3584*2048)
    e(f"  s_mul_i32 s73, s57, {128*7168}")
    e("  s_lshl_b32 s75, s58, 8")
    for j in range(4):
        e(f"  s_lshl_b32 s74, s56, 8")
        e(f"  s_add_u32 s74, s74, {j*64}")
        e(f"  v_add_u32 v32, s74, v1")
        e(f"  v_lshrrev_b32 v33, 3, v32")
        e(f"  v_and_b32 v34, 7, v32")
        e(f"  v_and_b32 v35, 7, v33")
        e(f"  v_xor_b32 v34, v34, v35")
        e(f"  v_mul_u32_u24 v35, 7168, v33")
        e(f"  v_lshl_add_u32 v35, v34, 4, v35")
        e(f"  v_add_u32 v{V_DA+j}, s73, v35")
        e(f"  v_lshrrev_b32 v33, 4, v32")
        e(f"  v_bfe_u32 v34, v32, 1, 3")
        e(f"  v_and_b32 v35, 7, v33")
        e(f"  v_xor_b32 v34, v34, v35")
        e(f"  v_lshlrev_b32 v34, 5, v34")
        e(f"  v_and_b32 v35, 1, v32")
        e(f"  v_lshl_add_u32 v34, v35, 4, v34")
        e(f"  v_and_b32 v35, 0x33, v33")
        e(f"  v_bfe_u32 v36, v33, 2, 1")
        e(f"  v_lshl_or_b32 v35, v36, 3, v35")
        e(f"  v_bfe_u32 v36, v33, 3, 1")
        e(f"  v_lshl_or_b32 v35, v36, 2, v35")
        e(f"  v_lshl_add_u32 v35, v35, 11, v34")
        e(f"  v_add_u32 v{V_DW+j}, s75, v35")
    e("  v_bfe_u32 v32, v1, 5, 1")
    e("  v_lshlrev_b32 v32, 4, v32")
    e("  v_bfe_u32 v33, v1, 4, 1")
    e("  v_lshlrev_b32 v33, 2, v33")
    e("  v_bfe_u32 v34, v1, 2, 2")
    e("  v_add_u32 v33, v33, v34")
    e("  v_add_u32 v32, v32, v33")
    e("  v_lshlrev_b32 v32, 8, v32")
    e("  v_and_b32 v34, 3, v1")
    e("  v_lshl_add_u32 v32, v34, 3, v32")
    e("  v_add_u32 v32, 16384, v32")
    e("  s_lshl_b32 s74, s88, 2")
    for j in range(4):
        e(f"  s_add_u32 s75, s74, {j}")
        e(f"  v_xor_b32 v34, s75, v33")
        e(f"  v_lshl_add_u32 v{V_RW+j}, v34, 5, v32")
    def dmaA():
        f = []
        for j in range(4):
            f.append([f"s_add_u32 s79, s62, s70", f"s_add_u32 m0, s79, {j*1024}"] if j == 0 else [f"s_add_u32 m0, s79, {j*1024}"])
            f.append(f"buffer_load_dwordx4 v{V_DA+j}, s[40:43], s63 offen lds")
        for j in range(4):
            f.append(f"s_add_u32 m0, s79, {16384+j*1024}")
            f.append(f"buffer_load_dwordx4 v{V_DW+j}, s[44:47], s64 offen lds")
        f.append(["s_add_u32 s63, s63, 128", f"s_add_u32 s64, s64, {64*2048}", "s_add_u32 s65, s65, 1"])
        f.append([f"s_add_u32 s62, s62, {ST}", f"s_cmp_ge_u32 s62, {NB*ST}", "s_cselect_b32 s62, 0, s62"])
        f.append([f"s_cmp_ge_u32 s65, {NST}", "s_cselect_b32 s42, 0, s42", "s_cselect_b32 s46, 0, s46"])
        return f
    def a_reads(st, u):
        va = V_RA1 if u else V_RA0
        b = FR + st*32
        r = [f"ds_read_b128 {vr(b+mt*4)}, v{va} offset:{mt*2048}" for mt in range(4)]
        for j in range(4):
            r.append(f"ds_read_b64_tr_b16 {vr(b+16+j*4,2)}, v{V_RW+j} offset:{u*8192}")
            r.append(f"ds_read_b64_tr_b16 {vr(b+18+j*4,2)}, v{V_RW+j} offset:{u*8192+2048}")
        return r
    def a_mfmas(st):
        b = FR + st*32
        return [f"v_mfma_f32_16x16x32_bf16 {vr(ACC+(j*4+mt)*4)}, {vr(b+16+j*4)}, {vr(b+mt*4)}, {vr(ACC+(j*4+mt)*4)}"
                for j in range(4) for mt in range(4)]
    def advA():
        return [["s_add_u32 s71, s71, 1", f"s_cmp_ge_u32 s71, {NB}", f"s_mov_b32 s72, {ST}", f"s_cselect_b32 s72, {-(NB-1)*ST & 0xffffffff}, s72", "s_cselect_b32 s71, 0, s71"]] + \
               [f"v_add_u32 v{x}, s72, v{x}" for x in (V_RA0, V_RA1, V_RW, V_RW+1, V_RW+2, V_RW+3)]
    for s in range(NB): flat_dma(dmaA())
    e(f"  s_waitcnt vmcnt({(NB-1)*D})")
    e("  s_barrier")
    flat(a_reads(0, 0))
    e("  s_mov_b32 s84, 0")
    Ll = Lbl.new("K2_A")
    e(f"{Ll}:")
    e("  s_waitcnt lgkmcnt(0)")
    interleave(a_mfmas(0), a_reads(1, 1), 0.75)
    e(f"  s_waitcnt vmcnt({(NB-2)*D}) lgkmcnt(0)")
    e("  s_barrier")
    interleave(a_mfmas(1), advA() + a_reads(0, 0) + dmaA(), 0.95)
    e("  s_add_u32 s84, s84, 1")
    e(f"  s_cmp_lt_u32 s84, {NST}")
    e(f"  s_cbranch_scc1 {Ll}")
    srd(48, P_WS, SZ_G, WS_G)
    e("  s_lshl_b32 s74, s57, 7")
    e("  s_lshl_b32 s75, s87, 6")
    e("  s_add_u32 s74, s74, s75")
    e("  v_add_u32 v32, s74, v3")
    e("  v_lshlrev_b32 v33, 2, v32")
    for mt in range(4):
        e(f"  buffer_load_dword v{40+mt}, v33, s[48:51], 0 offen offset:{mt*64}")
    srd(52, P_WS, SZ_T, WS_T)
    e("  s_lshl_b32 s74, s58, 8")
    e("  s_lshl_b32 s75, s88, 7")
    e("  s_add_u32 s74, s74, s75")
    e("  v_lshlrev_b32 v34, 11, v32")
    e("  v_lshl_add_u32 v34, v4, 3, v34")
    e("  v_add_u32 v34, s74, v34")
    e("  s_waitcnt vmcnt(0)")
    for mt in range(4):
        e(f"  v_sub_f32 v{40+mt}, 1.0, v{40+mt}")
        bf16_round(40+mt, 40+mt, 44)
    for mt in range(4):
        if mt: e(f"  v_add_u32 v34, {16*2048}, v34")
        for j in range(4):
            a = ACC + (j*4+mt)*4
            e(f"  v_cvt_pk_bf16_f32 v44, v{a}, v{a+1}")
            e(f"  v_cvt_pk_bf16_f32 v45, v{a+2}, v{a+3}")
            for i, (src, hi) in enumerate(((44,0),(44,1),(45,0),(45,1))):
                if hi: e(f"  v_and_b32 v{46+i}, 0xffff0000, v{src}")
                else:  e(f"  v_lshlrev_b32 v{46+i}, 16, v{src}")
            for i in range(4): e(f"  v_mul_f32 v{46+i}, v{46+i}, v{40+mt}")
            t = 50 + (j % 4)*2
            e(f"  v_cvt_pk_bf16_f32 v{t}, v46, v47")
            e(f"  v_cvt_pk_bf16_f32 v{t+1}, v48, v49")
            e(f"  buffer_store_dwordx2 {vr(t,2)}, v34, s[52:55], 0 offen offset:{j*32} sc0 sc1")
    e("  s_waitcnt vmcnt(0)")
    e("  s_barrier")
    e("  s_cmp_lg_u32 s56, 0")
    e(f"  s_cbranch_scc1 {Lend}")
    srd(48, P_DBG, 256)
    e("  s_lshr_b32 s74, s60, 1")
    e("  s_lshl_b32 s74, s74, 2")
    e("  s_and_b32 s75, s60, 1")
    e("  s_lshl_b32 s75, 1, s75")
    e("  s_mov_b64 exec, 1")
    e("  v_mov_b32 v20, s75")
    e("  v_mov_b32 v21, 0")
    e("  buffer_atomic_or v20, v21, s[48:51], s74 offen sc1")
    e(f"  s_branch {Lend}")

    e(f"{LB}:")
    NB = 3; ST = 49152; D = 12; NST = 32
    V_DA = 8; V_DW = 12; V_RW0, V_RW1 = 24, 25
    srd(40, P_WS, SZ_H, WS_HHI)
    srd(48, P_WS, SZ_H, WS_HLO)
    srd(44, P_CRE, 1024*2048)
    e("  s_lshl_b32 s73, s57, 19")
    e("  s_lshl_b32 s75, s58, 18")
    for j in range(4):
        e(f"  s_lshl_b32 s74, s56, 8")
        e(f"  s_add_u32 s74, s74, {j*64}")
        e(f"  v_add_u32 v32, s74, v1")
        e(f"  v_lshrrev_b32 v33, 3, v32")
        e(f"  v_and_b32 v34, 7, v32")
        e(f"  v_and_b32 v35, 7, v33")
        e(f"  v_xor_b32 v34, v34, v35")
        e(f"  v_lshlrev_b32 v34, 4, v34")
        e(f"  v_lshl_add_u32 v35, v33, 12, v34")
        e(f"  v_add_u32 v{V_DA+j}, s73, v35")
        e(f"  v_lshl_add_u32 v35, v33, 11, v34")
        e(f"  v_add_u32 v{V_DW+j}, s75, v35")
    e("  s_lshl_b32 s74, s88, 13")
    e("  s_add_u32 s74, s74, 32768")
    e(f"  v_add_u32 v{V_RW0}, s74, v31")
    e(f"  v_xor_b32 v{V_RW1}, 64, v{V_RW0}")
    def dmaB():
        f = []
        for j in range(4):
            f.append([f"s_add_u32 s79, s62, s70", f"s_add_u32 m0, s79, {j*1024}"] if j == 0 else [f"s_add_u32 m0, s79, {j*1024}"])
            f.append(f"buffer_load_dwordx4 v{V_DA+j}, s[40:43], s63 offen lds")
        for j in range(4):
            f.append(f"s_add_u32 m0, s79, {16384+j*1024}")
            f.append(f"buffer_load_dwordx4 v{V_DA+j}, s[48:51], s63 offen lds")
        for j in range(4):
            f.append(f"s_add_u32 m0, s79, {32768+j*1024}")
            f.append(f"buffer_load_dwordx4 v{V_DW+j}, s[44:47], s64 offen lds")
        f.append(["s_add_u32 s63, s63, 128", "s_add_u32 s64, s64, 128", "s_add_u32 s65, s65, 1"])
        f.append([f"s_add_u32 s62, s62, {ST}", f"s_cmp_ge_u32 s62, {NB*ST}", "s_cselect_b32 s62, 0, s62"])
        f.append(["s_cmp_eq_u32 s65, 16", f"s_cselect_b32 s44, s{P_CIM}, s44", f"s_cselect_b32 s45, s{P_CIM+1}, s45", "s_cselect_b32 s64, 0, s64"])
        f.append([f"s_cmp_ge_u32 s65, {NST}", "s_cselect_b32 s42, 0, s42", "s_cselect_b32 s46, 0, s46", "s_cselect_b32 s50, 0, s50"])
        return f
    def b_reads(st, u):
        va = V_RA1 if u else V_RA0; vw = V_RW1 if u else V_RW0
        b = FR + st*48
        r = [f"ds_read_b128 {vr(b+32+j*4)}, v{vw} offset:{j*2048}" for j in range(4)]
        r += [f"ds_read_b128 {vr(b+mt*4)}, v{va} offset:{mt*2048}" for mt in range(4)]
        r += [f"ds_read_b128 {vr(b+16+mt*4)}, v{va} offset:{16384+mt*2048}" for mt in range(4)]
        return r
    def b_mfmas(st):
        b = FR + st*48
        m = []
        for hl in range(2):
            for j in range(4):
                for mt in range(4):
                    acc = vr(ACC+(j*4+mt)*4)
                    m.append(f"v_mfma_f32_16x16x32_bf16 {acc}, {vr(b+32+j*4)}, {vr(b+hl*16+mt*4)}, {acc}")
        return m
    def advB():
        return [["s_add_u32 s71, s71, 1", f"s_cmp_ge_u32 s71, {NB}", f"s_mov_b32 s72, {ST}", f"s_cselect_b32 s72, {-(NB-1)*ST & 0xffffffff}, s72", "s_cselect_b32 s71, 0, s71"]] + \
               [f"v_add_u32 v{x}, s72, v{x}" for x in (V_RA0, V_RA1, V_RW0, V_RW1)]
    for s in range(NB): flat_dma(dmaB())
    e(f"  s_waitcnt vmcnt({(NB-1)*D})")
    e("  s_barrier")
    flat(b_reads(0, 0))
    e("  s_mov_b32 s84, 0")
    Ll = Lbl.new("K2_B")
    e(f"{Ll}:")
    e("  s_waitcnt lgkmcnt(0)")
    interleave(b_mfmas(0), b_reads(1, 1), 0.6)
    e(f"  s_waitcnt vmcnt({(NB-2)*D}) lgkmcnt(0)")
    e("  s_barrier")
    interleave(b_mfmas(1), advB() + b_reads(0, 0) + dmaB(), 0.9)
    e("  s_add_u32 s84, s84, 1")
    e(f"  s_cmp_lt_u32 s84, {NST}")
    e(f"  s_cbranch_scc1 {Ll}")
    srd(40, P_X, 2048*2048)
    srd(44, P_DSK, 2048)
    srd(48, P_WS, SZ_G, WS_G)
    e("  s_lshl_b32 s74, s57, 7")
    e("  s_lshl_b32 s75, s87, 6")
    e("  s_add_u32 s74, s74, s75")
    e("  v_add_u32 v32, s74, v3")
    e("  v_lshlrev_b32 v33, 2, v32")
    for mt in range(4):
        e(f"  buffer_load_dword v{40+mt}, v33, s[48:51], 0 offen offset:{mt*64}")
    e("  s_lshl_b32 s74, s58, 8")
    e("  s_lshl_b32 s75, s88, 7")
    e("  s_add_u32 s74, s74, s75")
    e("  v_lshl_add_u32 v35, v4, 3, s74")
    for j in range(4):
        e(f"  buffer_load_dwordx2 v[{44+2*j}:{45+2*j}], v35, s[44:47], 0 offen offset:{j*32}")
    e("  v_lshl_add_u32 v36, v32, 11, v35")
    for mt in range(4):
        for j in range(4):
            r = 128 + (mt*4+j)*2
            e(f"  s_mov_b32 s74, {mt*16*2048}")
            e(f"  buffer_load_dwordx2 v[{r}:{r+1}], v36, s[40:43], s74 offen offset:{j*32}")
    srd(48, P_DBG, 256)
    srd(52, P_WS, SZ_T, WS_T)
    e("  s_lshr_b32 s74, s60, 1")
    e("  s_lshl_b32 s74, s74, 2")
    e("  s_and_b32 s75, s60, 1")
    e("  s_lshl_b32 s75, 1, s75")
    e("  s_mov_b32 s78, 0")
    e("  v_mov_b32 v37, 0")
    Lp = Lbl.new("K2_poll"); Lg = Lbl.new("K2_got")
    e(f"{Lp}:")
    e("  buffer_load_dword v38, v37, s[48:51], s74 offen sc1")
    e("  s_waitcnt vmcnt(0)")
    e("  v_readfirstlane_b32 s79, v38")
    e("  s_add_u32 s78, s78, 1")
    e("  s_and_b32 s79, s79, s75")
    e(f"  s_cbranch_scc1 {Lg}")
    e("  s_cmp_gt_u32 s78, 0x100000")
    e(f"  s_cbranch_scc1 {Lg}")
    e("  s_sleep 2")
    e(f"  s_branch {Lp}")
    e(f"{Lg}:")
    for mt in range(4):
        for j in range(4):
            r = 160 + (mt*4+j)*2
            e(f"  s_mov_b32 s74, {mt*16*2048}")
            e(f"  buffer_load_dwordx2 v[{r}:{r+1}], v36, s[52:55], s74 offen offset:{j*32} sc0 sc1")
    srd(48, P_OUT, 2048*1024*4)
    e("  v_lshlrev_b32 v36, 1, v36")
    for j in range(4):
        for i in range(4):
            src = 44+2*j+(i >> 1)
            if i & 1: e(f"  v_and_b32 v{192+j*4+i}, 0xffff0000, v{src}")
            else:     e(f"  v_lshlrev_b32 v{192+j*4+i}, 16, v{src}")
    e("  s_waitcnt vmcnt(0)")
    for mt in range(4):
        for j in range(4):
            a = ACC + (j*4+mt)*4; xr = 128 + (mt*4+j)*2; tr = 160 + (mt*4+j)*2
            o = 208 + ((mt*4+j) % 4)*4
            for i in range(4):
                src = xr + (i >> 1)
                if i & 1: e(f"  v_and_b32 v{52+i}, 0xffff0000, v{src}")
                else:     e(f"  v_lshlrev_b32 v{52+i}, 16, v{src}")
            for i in range(4): e(f"  v_mul_f32 v{52+i}, v{52+i}, v{192+j*4+i}")
            e(f"  v_cvt_pk_bf16_f32 v56, v52, v53")
            e(f"  v_cvt_pk_bf16_f32 v57, v54, v55")
            for i, (src, hi) in enumerate(((56,0),(56,1),(57,0),(57,1))):
                if hi: e(f"  v_and_b32 v{52+i}, 0xffff0000, v{src}")
                else:  e(f"  v_lshlrev_b32 v{52+i}, 16, v{src}")
            for i in range(4): e(f"  v_fma_f32 v{52+i}, 2.0, v{a+i}, v{52+i}")
            for i in range(4): e(f"  v_mul_f32 v{52+i}, v{52+i}, v{40+mt}")
            for i in range(4):
                src = tr + (i >> 1)
                if i & 1: e(f"  v_and_b32 v{56+i}, 0xffff0000, v{src}")
                else:     e(f"  v_lshlrev_b32 v{56+i}, 16, v{src}")
            for i in range(4): e(f"  v_add_f32 v{o+i}, v{52+i}, v{56+i}")
            e(f"  s_mov_b32 s74, {mt*16*4096}")
            e(f"  buffer_store_dwordx4 {vr(o)}, v36, s[48:51], s74 offen offset:{j*64}")
    e(f"{Lend}:")
    e("  s_endpgm")

def desc(name, vgpr, accum):
    e(f".amdhsa_kernel {name}")
    e(f"  .amdhsa_next_free_vgpr {vgpr}")
    e("  .amdhsa_next_free_sgpr 102")
    e(f"  .amdhsa_accum_offset {accum}")
    e("  .amdhsa_group_segment_fixed_size 0")
    e("  .amdhsa_kernarg_size 136")
    e("  .amdhsa_user_sgpr_count 2")
    e("  .amdhsa_user_sgpr_kernarg_segment_ptr 1")
    e("  .amdhsa_system_sgpr_workgroup_id_x 1")
    e(".end_amdhsa_kernel")

def main():
    hdr = open("gated_mix__ssm_conv_s5__glu_gated_swiglu__prompt.s.ref").read().split("\n")
    for l in hdr:
        if l.startswith("; @launch"): break
        e(l)
    e("; @launch kernel=gm_phase1_kernel grid=(256,1,1) block=(256,1,1) lds=153600")
    e("; @launch kernel=gm_phase2_kernel grid=(256,1,1) block=(256,1,1) lds=147456")
    e('.amdgcn_target "amdgcn-amd-amdhsa--gfx950"')
    e(".text")
    kernel1()
    kernel2()
    e('.section .rodata,"a"')
    e(".p2align 6")
    desc("gm_phase1_kernel", 512, 256)
    e(".p2align 6")
    desc("gm_phase2_kernel", 256, 256)
    open(sys.argv[1] if len(sys.argv) > 1 else "gated_mix__ssm_conv_s5__glu_gated_swiglu__prompt.s", "w").write("\n".join(OUT) + "\n")

main()
```

```python
import sys

OUT = []
def e(s=""):
    if OUT and " lds" in s and s.strip().startswith("buffer_load") and " m0," in OUT[-1]:
        OUT.append("  s_nop 0")
    OUT.append(s)

class Lbl:
    n = 0
    @staticmethod
    def new(p="L"):
        Lbl.n += 1
        return f"{p}_{Lbl.n}"

WS_HMID = 0x0;        SZ_HMID = 2048*3584*2
WS_HHI  = 0x1000000;  SZ_H = 2048*2048*2
WS_HLO  = 0x1800000
WS_T    = 0x2000000;  SZ_T = 2048*1024*2
WS_G    = 0x2400000;  SZ_G = 2048*4
WS_AGG  = 0x2410000;  SZ_AGG = 8*512*16

P_X, P_LRE, P_LIM, P_BRE, P_BIM, P_CRE, P_CIM, P_LDT = 4, 6, 8, 10, 12, 14, 16, 18
P_DSK, P_BX, P_W1, P_W3, P_W2, P_GW, P_OUT, P_DBG = 20, 22, 24, 26, 28, 30, 32, 34
P_WS = 36

def srd(d, p, nbytes, off=0):
    if off:
        e(f"  s_add_u32 s{d}, s{p}, 0x{off:x}")
        e(f"  s_addc_u32 s{d+1}, s{p+1}, 0")
    else:
        e(f"  s_mov_b32 s{d}, s{p}")
        e(f"  s_mov_b32 s{d+1}, s{p+1}")
    e(f"  s_mov_b32 s{d+2}, 0x{nbytes:x}")
    e(f"  s_mov_b32 s{d+3}, 0x00020000")

def load_ptrs():
    e("  s_load_dwordx16 s[4:19], s[0:1], 0")
    e("  s_load_dwordx16 s[20:35], s[0:1], 64")
    e("  s_load_dwordx2 s[36:37], s[0:1], 128")

def vr(b, n=4): return f"v[{b}:{b+n-1}]"
def ar(b, n=4): return f"a[{b}:{b+n-1}]"

def interleave(mfmas, fillers, frac=0.8):
    M = len(mfmas); F = len(fillers)
    span = max(1, int(M*frac))
    done = 0
    for i, m in enumerate(mfmas):
        e("  " + m)
        want = min(F, ((i+1)*F + span - 1)//span)
        while done < want:
            f = fillers[done]; done += 1
            if isinstance(f, str): e("  " + f)
            else:
                for x in f: e("  " + x)
    while done < F:
        f = fillers[done]; done += 1
        if isinstance(f, str): e("  " + f)
        else:
            for x in f: e("  " + x)

PROF = len(sys.argv) > 2 and sys.argv[2] == "prof"
import os
EXP = os.environ.get("EXP", "")
STAMP = dict(t=14, regs=[16,17,20,21,22,23,28,29,32,33])
def stamp(i):
    if not PROF: return
    t = STAMP["t"]
    e(f"  s_memtime s[{t}:{t+1}]")
    e("  s_waitcnt lgkmcnt(0)")
    e(f"  s_mov_b32 s{STAMP['regs'][i]}, s{t}")
def stamp_flush(kid, n):
    if not PROF: return
    srd(48, P_WS, 0x100000, 0x3000000 + kid*0x10000)
    t = STAMP["t"]
    e(f"  s_lshl_b32 s{t}, s2, 8")
    e(f"  s_lshl_b32 s{t+1}, s56, 6")
    e(f"  s_add_u32 s{t}, s{t}, s{t+1}")
    e("  v_mov_b32 v251, 0")
    for i in range(n):
        e(f"  v_mov_b32 v250, s{STAMP['regs'][i]}")
        e(f"  buffer_store_dword v250, v251, s[48:51], s{t} offen offset:{i*4}")
        e("  s_waitcnt vmcnt(0)")

def bf16_round(dst, src, tmp):
    e(f"  v_cvt_pk_bf16_f32 v{tmp}, v{src}, v{src}")
    e(f"  v_lshlrev_b32 v{dst}, 16, v{tmp}")

def mix(reads, dma):
    groups = []
    i = 0
    while i < len(dma):
        f = dma[i]
        txt = f if isinstance(f, str) else " ".join(f)
        if " m0," in txt and i + 1 < len(dma):
            groups.append([dma[i], dma[i+1]]); i += 2
        else:
            groups.append([dma[i]]); i += 1
    out = []
    n = len(reads); g = len(groups)
    gi = 0
    for k, r in enumerate(reads):
        out.append(r)
        want = ((k+1)*g)//n
        while gi < want:
            out += groups[gi]; gi += 1
    while gi < g:
        out += groups[gi]; gi += 1
    return out

def flat(fl):
    for f in fl:
        if isinstance(f, str): e("  " + f)
        else:
            for x in f: e("  " + x)

def kernel1():
    K = "gm_phase1_kernel"
    e(f".globl {K}\n.p2align 8\n.type {K},@function\n{K}:")
    Lend = "K1_end"
    e("  s_cmp_ge_u32 s2, 256")
    e(f"  s_cbranch_scc1 {Lend}")
    load_ptrs()
    e("  v_and_b32 v1, 63, v0")
    e("  v_lshrrev_b32 v2, 6, v0")
    e("  s_nop 0")
    e("  v_readfirstlane_b32 s56, v2")
    e("  v_and_b32 v3, 15, v1")
    e("  v_lshrrev_b32 v4, 4, v1")
    e("  s_lshr_b32 s57, s2, 3")
    e("  s_and_b32 s57, s57, 7")
    e("  s_and_b32 s58, s2, 7")
    e("  s_lshl_b32 s58, s58, 2")
    e("  s_lshr_b32 s59, s2, 6")
    e("  s_add_u32 s58, s58, s59")
    NBUF = 4; STG = 34816; D = 9
    OFF_W = 16384; OFF_S = 30720
    V_DA = 8
    V_DW = 12
    V_DS = 16
    V_RA = 17; V_RW = 18; V_RS = 19
    AFR = 32
    SACC = 64
    GACC = 128
    UACC = 0
    FR = 112
    TMP = 20
    e("  s_lshl_b32 s73, s57, 19")
    for j in range(4):
        e(f"  s_lshl_b32 s74, s56, 8")
        e(f"  s_add_u32 s74, s74, {j*64}")
        e(f"  v_add_u32 v20, s74, v1")
        e(f"  v_lshrrev_b32 v21, 2, v20")
        e(f"  v_and_b32 v22, 3, v20")
        e(f"  v_bfe_u32 v23, v21, 3, 1")
        e(f"  v_mul_u32_u24 v23, 3, v23")
        e(f"  v_xor_b32 v22, v22, v23")
        e(f"  v_lshlrev_b32 v21, 11, v21")
        e(f"  v_lshl_add_u32 v21, v22, 4, v21")
        e(f"  v_add_u32 v{V_DA+j}, s73, v21")
    e("  s_mul_i32 s75, s58, 224")
    e("  s_and_b32 s76, s56, 1")
    e("  s_lshl_b32 s76, s76, 2")
    e("  s_lshr_b32 s77, s56, 1")
    e("  s_mul_i32 s77, s77, 7168")
    e(f"  s_add_u32 s77, s77, {OFF_W}")
    for j in range(4):
        e(f"  s_add_u32 s74, s76, {j}")
        e(f"  s_min_u32 s74, s74, 6")
        e(f"  s_lshl_b32 s78, s74, 10")
        e(f"  s_add_u32 s{66+j}, s78, s77")
        e(f"  s_lshl_b32 s74, s74, 6")
        e(f"  v_add_u32 v20, s74, v1")
        e(f"  v_mul_u32_u24 v21, 4682, v20")
        e(f"  v_lshrrev_b32 v21, 16, v21")
        e(f"  v_mul_u32_u24 v22, 14, v21")
        e(f"  v_sub_u32 v22, v20, v22")
        e(f"  v_and_b32 v23, 0x13, v21")
        e(f"  v_bfe_u32 v24, v21, 2, 1")
        e(f"  v_lshl_or_b32 v23, v24, 3, v23")
        e(f"  v_bfe_u32 v24, v21, 3, 1")
        e(f"  v_lshl_or_b32 v23, v24, 2, v23")
        e(f"  v_mul_u32_u24 v23, 7168, v23")
        e(f"  v_lshl_add_u32 v23, v22, 4, v23")
        e(f"  v_add_u32 v{V_DW+j}, s75, v23")
    e("  s_lshl_b32 s74, s56, 6")
    e("  v_add_u32 v20, s74, v1")
    e("  v_lshrrev_b32 v21, 2, v20")
    e("  v_and_b32 v22, 3, v20")
    e("  v_bfe_u32 v23, v21, 3, 1")
    e("  v_mul_u32_u24 v23, 3, v23")
    e("  v_xor_b32 v22, v22, v23")
    e("  v_and_b32 v21, 31, v21")
    e("  v_lshlrev_b32 v21, 11, v21")
    e("  v_lshl_add_u32 v21, v22, 4, v21")
    e("  s_lshl_b32 s74, s58, 16")
    e(f"  v_add_u32 v{V_DS}, s74, v21")
    e("  s_lshl_b32 s70, s56, 12")
    e("  s_lshl_b32 s80, s56, 10")
    e(f"  s_add_u32 s80, s80, {OFF_S}")
    e("  v_bfe_u32 v20, v1, 3, 1")
    e("  v_mul_u32_u24 v20, 3, v20")
    e("  v_xor_b32 v20, v20, v4")
    e("  v_lshlrev_b32 v20, 4, v20")
    e("  v_lshl_add_u32 v20, v3, 6, v20")
    e(f"  v_add_u32 v{V_RA}, s70, v20")
    e(f"  v_add_u32 v{V_RS}, {OFF_S}, v20")
    e("  v_bfe_u32 v20, v1, 5, 1")
    e("  v_lshlrev_b32 v20, 4, v20")
    e("  v_bfe_u32 v21, v1, 4, 1")
    e("  v_lshl_add_u32 v20, v21, 2, v20")
    e("  v_bfe_u32 v21, v1, 2, 2")
    e("  v_add_u32 v20, v20, v21")
    e("  v_mul_u32_u24 v20, 224, v20")
    e("  v_and_b32 v21, 3, v1")
    e("  v_lshl_add_u32 v20, v21, 3, v20")
    e(f"  v_add_u32 v{V_RW}, {OFF_W}, v20")
    for r in (62, 63, 64, 65, 71): e(f"  s_mov_b32 s{r}, 0")
    e("  s_waitcnt lgkmcnt(0)")
    stamp(0)
    srd(40, P_X, 2048*2048)
    e("  s_cmp_lt_u32 s56, 2")
    e(f"  s_cselect_b32 s44, s{P_W1}, s{P_W3}")
    e(f"  s_cselect_b32 s45, s{P_W1+1}, s{P_W3+1}")
    e(f"  s_mov_b32 s46, 0x{1024*7168:x}")
    e("  s_mov_b32 s47, 0x00020000")
    e(f"  s_cselect_b32 s96, s{P_BRE}, s{P_BIM}")
    e(f"  s_cselect_b32 s97, s{P_BRE+1}, s{P_BIM+1}")
    e(f"  s_mov_b32 s98, 0x{1024*2048:x}")
    e("  s_mov_b32 s99, 0x00020000")

    def dma_stage():
        f = []
        for j in range(4):
            f.append([f"s_add_u32 s79, s62, s70", f"s_add_u32 m0, s79, {j*1024}"] if j == 0 else [f"s_add_u32 m0, s79, {j*1024}"])
            f.append(f"buffer_load_dwordx4 v{V_DA+j}, s[40:43], s63 offen lds")
        for j in range(4):
            f.append(f"s_add_u32 m0, s62, s{66+j}")
            f.append(f"buffer_load_dwordx4 v{V_DW+j}, s[44:47], s64 offen lds")
        f.append(f"s_add_u32 m0, s62, s80")
        f.append(f"buffer_load_dwordx4 v{V_DS}, s[96:99], s63 offen lds")
        f.append(["s_add_u32 s63, s63, 64", f"s_add_u32 s64, s64, {32*7168}", "s_add_u32 s65, s65, 1"])
        f.append([f"s_add_u32 s62, s62, {STG}", f"s_cmp_ge_u32 s62, {NBUF*STG}", "s_cselect_b32 s62, 0, s62"])
        f.append(["s_cmp_ge_u32 s65, 32", "s_cselect_b32 s42, 0, s42", "s_cselect_b32 s46, 0, s46", "s_cselect_b32 s98, 0, s98"])
        return f
    flat(dma_stage())
    srd(48, P_GW, 2048)
    e("  s_lshl_b32 s60, s2, 3")
    e("  s_lshl_b32 s61, s56, 1")
    e("  s_add_u32 s60, s60, s61")
    e("  s_lshl_b32 s61, s60, 11")
    e("  v_lshlrev_b32 v5, 5, v1")
    e("  buffer_load_dwordx4 v[20:23], v5, s[48:51], 0 offen")
    e("  buffer_load_dwordx4 v[24:27], v5, s[48:51], 0 offen offset:16")
    e("  buffer_load_dwordx4 v[240:243], v5, s[40:43], s61 offen")
    e("  buffer_load_dwordx4 v[244:247], v5, s[40:43], s61 offen offset:16")
    e("  buffer_load_dwordx4 v[248:251], v5, s[40:43], s61 offen offset:2048")
    e("  buffer_load_dwordx4 v[252:255], v5, s[40:43], s61 offen offset:2064")
    zer = []
    for i in range(112):
        zer.append(f"v_mov_b32 v{GACC+i}, 0")
        zer.append(f"v_accvgpr_write_b32 a{UACC+i}, 0")
    for i in range(64): zer.append(f"v_mov_b32 v{SACC+i}, 0")
    dl = []
    for s_ in range(NBUF-1): dl += dma_stage()
    interleave(zer, dl, 1.0)

    def g_compute():
        for row in range(2):
            e(f"  v_mov_b32 v{28+row}, 0")
            for d in range(8):
                xv = 240 + row*8 + d; gv = 20 + d
                e(f"  v_lshlrev_b32 v32, 16, v{xv}")
                e(f"  v_lshlrev_b32 v33, 16, v{gv}")
                e(f"  v_and_b32 v34, 0xffff0000, v{xv}")
                e(f"  v_and_b32 v35, 0xffff0000, v{gv}")
                e(f"  v_pk_mul_f32 v[32:33], v[32:33], v[32:33] op_sel:[0,1] op_sel_hi:[0,1]") if False else None
                e(f"  v_mul_f32 v32, v32, v33")
                e(f"  v_mul_f32 v34, v34, v35")
                e(f"  v_cvt_pk_bf16_f32 v32, v32, v34")
                e(f"  v_lshlrev_b32 v33, 16, v32")
                e(f"  v_and_b32 v34, 0xffff0000, v32")
                e(f"  v_add_f32 v{28+row}, v{28+row}, v33")
                e(f"  v_add_f32 v{28+row}, v{28+row}, v34")
        for off in (0x041F, 0x081F, 0x101F, 0x201F, 0x401F):
            e(f"  ds_swizzle_b32 v30, v28 offset:0x{off:04X}")
            e(f"  ds_swizzle_b32 v31, v29 offset:0x{off:04X}")
            e("  s_waitcnt lgkmcnt(0)")
            e("  v_add_f32 v28, v28, v30")
            e("  v_add_f32 v29, v29, v31")
        e("  s_nop 1")
        e("  v_readlane_b32 s81, v28, 32")
        e("  v_readlane_b32 s82, v29, 32")
        e("  s_nop 1")
        e("  v_add_f32 v28, s81, v28")
        e("  v_add_f32 v29, s82, v29")
        srd(48, P_WS, SZ_G, WS_G)
        for row in range(2):
            v = 28 + row
            bf16_round(v, v, 32)
            e(f"  v_mul_f32 v33, 0xbfb8aa3b, v{v}")
            e(f"  v_exp_f32 v33, v33")
            e("  s_nop 0")
            e(f"  v_add_f32 v33, 1.0, v33")
            e(f"  v_rcp_f32 v33, v33")
            e("  s_nop 0")
            bf16_round(v, 33, 32)
        e("  s_lshl_b32 s61, s60, 2")
        e("  v_mov_b32 v33, 0")
        e("  s_mov_b64 s[82:83], exec")
        e("  s_mov_b64 exec, 1")
        e("  buffer_store_dword v28, v33, s[48:51], s61 offen")
        e("  buffer_store_dword v29, v33, s[48:51], s61 offen offset:4")
        e("  s_mov_b64 exec, s[82:83]")

    def f_act(st, mt): return AFR + st*16 + mt*4
    def f_w(st, nt): return FR + st*72 + nt*4
    def reads(st):
        r = []
        for mt in range(4):
            r.append(f"ds_read_b128 {vr(f_act(st,mt))}, v{V_RA} offset:{mt*1024}")
        for nt in range(14):
            base = (nt % 7)*32 + (7168 if nt >= 7 else 0)
            b = f_w(st, nt)
            r.append(f"ds_read_b64_tr_b16 {ar(b,2)}, v{V_RW} offset:{base}")
            r.append(f"ds_read_b64_tr_b16 {ar(b+2,2)}, v{V_RW} offset:{base+8*224}")
        for q in range(4):
            r.append(f"ds_read_b128 {ar(f_w(st,14+q))}, v{V_RS} offset:{q*1024}")
        return r
    def mfmas(st):
        m = []
        for nt in range(18):
            for mt in range(4):
                if nt < 7: acc = vr(GACC + (nt*4+mt)*4)
                elif nt < 14: acc = ar(UACC + ((nt-7)*4+mt)*4)
                else: acc = vr(SACC + ((nt-14)*4+mt)*4)
                m.append(f"v_mfma_f32_16x16x32_bf16 {acc}, {ar(f_w(st,nt))}, {vr(f_act(st,mt))}, {acc}")
        return m
    def adv_read():
        return [["s_add_u32 s71, s71, 1", f"s_cmp_ge_u32 s71, {NBUF}", f"s_mov_b32 s72, {STG}", f"s_cselect_b32 s72, {-(NBUF-1)*STG & 0xffffffff}, s72", "s_cselect_b32 s71, 0, s71"],
                f"v_add_u32 v{V_RA}, s72, v{V_RA}", f"v_add_u32 v{V_RW}, s72, v{V_RW}", f"v_add_u32 v{V_RS}, s72, v{V_RS}"]
    e(f"  s_waitcnt vmcnt({(NBUF-1)*D + 6})")
    e("  s_barrier")
    stamp(1)
    flat(reads(0))
    e("  s_mov_b32 s84, 0")
    Lloop = Lbl.new("K1_main")
    e(f"{Lloop}:")
    for half in range(2):
        e(f"  s_waitcnt vmcnt({(NBUF-2)*D}) lgkmcnt(0)")
        if "nobar" not in EXP: e("  s_barrier")
        fl = adv_read() + mix(reads(1-half), dma_stage())
        interleave(mfmas(half), fl, 0.95)
    e("  s_add_u32 s84, s84, 1")
    e("  s_cmp_lt_u32 s84, 16")
    e(f"  s_cbranch_scc1 {Lloop}")
    e("  s_waitcnt vmcnt(0) lgkmcnt(0)")
    e("  s_barrier")
    stamp(2)
    g_compute()

    UST = 272; EOFF = 69632
    e("  s_lshl_b32 s74, s56, 6")
    e("  v_add_u32 v20, s74, v3")
    e(f"  v_mul_u32_u24 v20, {UST}, v20")
    e("  v_lshl_add_u32 v20, v4, 4, v20")
    for p in range(2):
        for j in range(2):
            for mt in range(4):
                e(f"  ds_write_b128 v20, {vr(SACC + p*32 + (j*4+mt)*4)} offset:{mt*16*UST + j*64 + p*128}")
    e("  s_lshl_b32 s74, s56, 2")
    e("  v_add_u32 v34, s74, v4")
    e("  s_lshl_b32 s74, s58, 6")
    e("  v_lshl_add_u32 v35, v3, 2, s74")
    srd(48, P_LRE, 2048)
    e("  buffer_load_dword v36, v35, s[48:51], 0 offen")
    srd(52, P_LIM, 2048)
    e("  buffer_load_dword v37, v35, s[52:55], 0 offen")
    srd(48, P_LDT, 2048)
    e("  buffer_load_dword v38, v35, s[48:51], 0 offen")
    e("  s_waitcnt vmcnt(0) lgkmcnt(0)")
    e("  s_barrier")
    e(f"  v_lshlrev_b32 v62, 4, v34")
    e(f"  v_mul_u32_u24 v62, {UST}, v62")
    e("  v_lshl_add_u32 v62, v3, 3, v62")
    def u_reads():
        for i in range(16):
            e(f"  ds_read_b64 v[{64+4*i}:{65+4*i}], v62 offset:{i*UST}")
            e(f"  ds_read_b64 v[{66+4*i}:{67+4*i}], v62 offset:{i*UST+128}")
    u_reads()
    for (src, dst) in ((36, 40), (37, 42), (38, 44)):
        e(f"  v_lshlrev_b32 v{dst}, 16, v{src}")
        e(f"  v_and_b32 v{dst+1}, 0xffff0000, v{src}")
    for c in range(2):
        e(f"  v_mul_f32 v{44+c}, 0x3fb8aa3b, v{44+c}")
        e(f"  v_exp_f32 v{44+c}, v{44+c}")
        e("  s_nop 0")
        bf16_round(44+c, 44+c, 32)
        e(f"  v_mul_f32 v46, v{44+c}, v{40+c}")
        e(f"  v_mul_f32 v47, v{44+c}, v{42+c}")
        e(f"  v_mul_f32 v46, 0x3fb8aa3b, v46")
        e(f"  v_exp_f32 v46, v46")
        e(f"  v_mul_f32 v47, 0.15915494, v47")
        e(f"  v_fract_f32 v47, v47")
        e(f"  v_cos_f32 v48, v47")
        e(f"  v_sin_f32 v49, v47")
        e("  s_nop 0")
        e(f"  v_mul_f32 v{50+c}, v46, v48")
        e(f"  v_mul_f32 v{52+c}, v46, v49")
        e(f"  v_mul_f32 v46, v{40+c}, v{40+c}")
        e(f"  v_fmac_f32 v46, v{42+c}, v{42+c}")
        e(f"  v_rcp_f32 v46, v46")
        e(f"  v_add_f32 v47, -1.0, v{50+c}")
        e(f"  v_mul_f32 v48, v47, v{40+c}")
        e(f"  v_fmac_f32 v48, v{52+c}, v{42+c}")
        e(f"  v_mul_f32 v49, v{52+c}, v{40+c}")
        e(f"  v_fma_f32 v49, -v47, v{42+c}, v49")
        e(f"  v_mul_f32 v{54+c}, v48, v46")
        e(f"  v_mul_f32 v{56+c}, v49, v46")
    for c in range(2):
        e(f"  v_xor_b32 v{58+c}, 0x80000000, v{52+c}")
        e(f"  v_xor_b32 v{60+c}, 0x80000000, v{56+c}")
    def cmul(dr, di, ar_, ai, br, bi, nbi, tr):
        e(f"  v_pk_mul_f32 v[{tr}:{tr+1}], v[{ar_}:{ar_+1}], v[{br}:{br+1}]")
        e(f"  v_pk_mul_f32 v[{tr+2}:{tr+3}], v[{ai}:{ai+1}], v[{br}:{br+1}]")
        e(f"  v_pk_fma_f32 v[{tr}:{tr+1}], v[{ai}:{ai+1}], v[{nbi}:{nbi+1}], v[{tr}:{tr+1}]")
        e(f"  v_pk_fma_f32 v[{tr+2}:{tr+3}], v[{ar_}:{ar_+1}], v[{bi}:{bi+1}], v[{tr+2}:{tr+3}]")
        e(f"  v_mov_b32 v{dr}, v{tr}\n  v_mov_b32 v{dr+1}, v{tr+1}\n  v_mov_b32 v{di}, v{tr+2}\n  v_mov_b32 v{di+1}, v{tr+3}")
    def cneg(d, s):
        e(f"  v_xor_b32 v{d}, 0x80000000, v{s}\n  v_xor_b32 v{d+1}, 0x80000000, v{s+1}")
    for k in range(2):
        e(f"  v_mov_b32 v{8+k}, v{50+k}\n  v_mov_b32 v{10+k}, v{52+k}")
    for it in range(4):
        cneg(12, 10); cmul(8, 10, 8, 10, 8, 10, 12, 20)
    cneg(12, 10)
    for k in range(2):
        e(f"  v_mov_b32 v{14+k}, v{8+k}\n  v_mov_b32 v{16+k}, v{10+k}")
    for it in range(4):
        cneg(18, 16); cmul(14, 16, 14, 16, 14, 16, 18, 20)
    cneg(18, 16)
    e("  s_waitcnt lgkmcnt(0)")
    for k in range(4): e(f"  v_mov_b32 v{24+k}, 0")
    def hstep(bur, bui):
        e(f"  v_pk_fma_f32 v[20:21], v[24:25], v[50:51], v[{bur}:{bur+1}]")
        e(f"  v_pk_fma_f32 v[22:23], v[26:27], v[50:51], v[{bui}:{bui+1}]")
        e(f"  v_pk_fma_f32 v[20:21], v[26:27], v[58:59], v[20:21]")
        e(f"  v_pk_fma_f32 v[26:27], v[24:25], v[52:53], v[22:23]")
        e(f"  v_mov_b32 v24, v20\n  v_mov_b32 v25, v21")
    for i in range(16):
        ur = 64+4*i; ui = 66+4*i
        e(f"  v_pk_mul_f32 v[28:29], v[{ur}:{ur+1}], v[54:55]")
        e(f"  v_pk_mul_f32 v[30:31], v[{ui}:{ui+1}], v[54:55]")
        e(f"  v_pk_fma_f32 v[28:29], v[{ui}:{ui+1}], v[60:61], v[28:29]")
        e(f"  v_pk_fma_f32 v[{ui}:{ui+1}], v[{ur}:{ur+1}], v[56:57], v[30:31]")
        e(f"  v_mov_b32 v{ur}, v28\n  v_mov_b32 v{ur+1}, v29")
        e(f"  ds_write_b64 v62, v[{ur}:{ur+1}] offset:{i*UST}")
        e(f"  ds_write_b64 v62, v[{ui}:{ui+1}] offset:{i*UST+128}")
        hstep(ur, ui)
    e("  v_lshlrev_b32 v39, 8, v34")
    e("  v_lshl_add_u32 v39, v3, 4, v39")
    e(f"  v_add_u32 v39, {EOFF}, v39")
    e(f"  ds_write_b128 v39, v[24:27]")
    e("  s_waitcnt lgkmcnt(0)")
    e("  s_barrier")
    e("  v_lshlrev_b32 v63, 4, v3")
    e(f"  v_add_u32 v63, {EOFF}, v63")
    def seg_reads():
        for i in range(16):
            e(f"  ds_read_b128 v[{64+4*i}:{67+4*i}], v63 offset:{i*256}")
        e("  s_waitcnt lgkmcnt(0)")
    seg_reads()
    def horner(init_zero):
        if init_zero:
            for k in range(4): e(f"  v_mov_b32 v{24+k}, 0")
        for i in range(16):
            if not init_zero:
                e(f"  v_cmp_eq_u32 vcc, {i}, v34")
                e("  s_nop 1")
                for k in range(4): e(f"  v_cndmask_b32 v{28+k}, v{28+k}, v{24+k}, vcc")
            er = 64+4*i
            e(f"  v_pk_fma_f32 v[20:21], v[24:25], v[8:9], v[{er}:{er+1}]")
            e(f"  v_pk_fma_f32 v[22:23], v[26:27], v[8:9], v[{er+2}:{er+3}]")
            e(f"  v_pk_fma_f32 v[20:21], v[26:27], v[12:13], v[20:21]")
            e(f"  v_pk_fma_f32 v[26:27], v[24:25], v[10:11], v[22:23]")
            e(f"  v_mov_b32 v24, v20\n  v_mov_b32 v25, v21")
    horner(True)
    srd(40, P_WS, SZ_AGG, WS_AGG)
    srd(44, P_DBG, 256)
    e("  s_lshl_b32 s74, s58, 8")
    e("  v_lshl_add_u32 v39, v3, 4, s74")
    e("  s_lshl_b32 s75, s57, 13")
    e("  s_lshl_b32 s76, s58, 2")
    Lnp = Lbl.new("K1_nopub")
    e("  s_cmp_lg_u32 s56, 0")
    e(f"  s_cbranch_scc1 {Lnp}")
    e("  s_mov_b64 s[82:83], exec")
    e("  s_mov_b64 exec, 0xffff")
    e("  buffer_store_dwordx4 v[24:27], v39, s[40:43], s75 offen sc1")
    e("  s_waitcnt vmcnt(0)")
    e("  s_mov_b64 exec, 1")
    e("  s_lshl_b32 s77, 1, s57")
    e("  v_mov_b32 v20, s77")
    e("  v_mov_b32 v21, 0")
    e("  buffer_atomic_or v20, v21, s[44:47], s76 offen sc1")
    e("  s_mov_b64 exec, s[82:83]")
    e(f"{Lnp}:")
    stamp(3)

    T = 64
    srd(48, P_WS, SZ_HMID, WS_HMID)
    e("  s_lshl_b32 s74, s57, 8")
    e("  s_lshl_b32 s77, s56, 6")
    e("  s_add_u32 s74, s74, s77")
    e(f"  v_add_u32 v{T}, s74, v3")
    e(f"  v_mul_u32_u24 v{T}, 7168, v{T}")
    e("  s_mul_i32 s74, s58, 224")
    e(f"  v_lshl_add_u32 v{T}, v4, 3, v{T}")
    e(f"  v_add_u32 v98, s74, v{T}")
    e("  s_mov_b32 s74, 0xbfb8aa3b")
    def unpk(dst, srcs):
        for i, (src, hi) in enumerate(srcs):
            if hi: e(f"  v_and_b32 v{dst+i}, 0xffff0000, v{src}")
            else:  e(f"  v_lshlrev_b32 v{dst+i}, 16, v{src}")
    for mt in range(4):
        if mt: e(f"  v_add_u32 v98, {16*7168}, v98")
        for nt in range(7):
            g = GACC + (nt*4+mt)*4; u = UACC + (nt*4+mt)*4
            e(f"  v_cvt_pk_bf16_f32 v{T}, v{g}, v{g+1}")
            e(f"  v_cvt_pk_bf16_f32 v{T+1}, v{g+2}, v{g+3}")
            unpk(T+2, ((T,0),(T,1),(T+1,0),(T+1,1)))
            for i in range(4): e(f"  v_mul_f32 v{T+6+i}, s74, v{T+2+i}")
            for i in range(4): e(f"  v_exp_f32 v{T+6+i}, v{T+6+i}")
            for i in range(4): e(f"  v_accvgpr_read_b32 v{T+14+i}, a{u+i}")
            for i in range(4): e(f"  v_add_f32 v{T+6+i}, 1.0, v{T+6+i}")
            for i in range(4): e(f"  v_rcp_f32 v{T+6+i}, v{T+6+i}")
            e(f"  v_cvt_pk_bf16_f32 v{T+12}, v{T+14}, v{T+15}")
            e(f"  v_cvt_pk_bf16_f32 v{T+13}, v{T+16}, v{T+17}")
            e(f"  v_pk_mul_f32 v[{T+6}:{T+7}], v[{T+2}:{T+3}], v[{T+6}:{T+7}]")
            e(f"  v_pk_mul_f32 v[{T+8}:{T+9}], v[{T+4}:{T+5}], v[{T+8}:{T+9}]")
            e(f"  v_cvt_pk_bf16_f32 v{T+10}, v{T+6}, v{T+7}")
            e(f"  v_cvt_pk_bf16_f32 v{T+11}, v{T+8}, v{T+9}")
            unpk(T+2, ((T+10,0),(T+10,1),(T+11,0),(T+11,1)))
            unpk(T+6, ((T+12,0),(T+12,1),(T+13,0),(T+13,1)))
            e(f"  v_pk_mul_f32 v[{T+2}:{T+3}], v[{T+2}:{T+3}], v[{T+6}:{T+7}]")
            e(f"  v_pk_mul_f32 v[{T+4}:{T+5}], v[{T+4}:{T+5}], v[{T+8}:{T+9}]")
            t = 90 + ((mt*7+nt) % 4)*2
            e(f"  v_cvt_pk_bf16_f32 v{t}, v{T+2}, v{T+3}")
            e(f"  v_cvt_pk_bf16_f32 v{t+1}, v{T+4}, v{T+5}")
            e(f"  buffer_store_dwordx2 {vr(t,2)}, v98, s[48:51], 0 offen offset:{nt*32}")
    stamp(4)

    for k in range(4): e(f"  v_mov_b32 v{24+k}, 0")
    Lnw = Lbl.new("K1_nowait"); Lpoll = Lbl.new("K1_poll"); Lgot = Lbl.new("K1_got")
    e("  s_cmp_eq_u32 s57, 0")
    e(f"  s_cbranch_scc1 {Lnw}")
    e("  s_lshl_b32 s77, 1, s57")
    e("  s_sub_u32 s77, s77, 1")
    e("  s_mov_b32 s78, 0")
    e("  v_mov_b32 v21, 0")
    e(f"{Lpoll}:")
    e("  buffer_load_dword v20, v21, s[44:47], s76 offen sc1")
    e("  s_waitcnt vmcnt(0)")
    e("  v_readfirstlane_b32 s79, v20")
    e("  s_add_u32 s78, s78, 1")
    e("  s_and_b32 s79, s79, s77")
    e("  s_cmp_eq_u32 s79, s77")
    e(f"  s_cbranch_scc1 {Lgot}")
    e("  s_cmp_gt_u32 s78, 0x100000")
    e(f"  s_cbranch_scc1 {Lgot}")
    e("  s_sleep 2")
    e(f"  s_branch {Lpoll}")
    e(f"{Lgot}:")
    for i in range(7):
        e(f"  s_mov_b32 s77, {i*8192}")
        e(f"  buffer_load_dwordx4 v[{64+4*i}:{67+4*i}], v39, s[40:43], s77 offen sc1")
    e("  s_waitcnt vmcnt(0)")
    for i in range(7):
        if i:
            e(f"  s_cmp_le_u32 s57, {i}")
            e(f"  s_cbranch_scc1 {Lnw}")
        er = 64+4*i
        e(f"  v_pk_fma_f32 v[20:21], v[24:25], v[14:15], v[{er}:{er+1}]")
        e(f"  v_pk_fma_f32 v[22:23], v[26:27], v[14:15], v[{er+2}:{er+3}]")
        e(f"  v_pk_fma_f32 v[20:21], v[26:27], v[18:19], v[20:21]")
        e(f"  v_pk_fma_f32 v[26:27], v[24:25], v[16:17], v[22:23]")
        e(f"  v_mov_b32 v24, v20\n  v_mov_b32 v25, v21")
    e(f"{Lnw}:")
    stamp(5)
    seg_reads()
    horner(False)
    u_reads()
    for k in range(4): e(f"  v_mov_b32 v{24+k}, v{28+k}")
    srd(48, P_WS, SZ_H, WS_HHI)
    srd(52, P_WS, SZ_H, WS_HLO)
    e("  s_lshl_b32 s74, s57, 20")
    e("  v_lshlrev_b32 v39, 16, v34")
    e("  v_add3_u32 v39, v39, v35, s74")
    e("  s_waitcnt lgkmcnt(0)")
    for i in range(16):
        hstep(64+4*i, 66+4*i)
        o = 240 + (i % 4)*4
        e(f"  v_cvt_pk_bf16_f32 v{o}, v24, v25")
        e(f"  v_cvt_pk_bf16_f32 v{o+2}, -v26, -v27")
        e(f"  v_lshlrev_b32 v28, 16, v{o}")
        e(f"  v_and_b32 v29, 0xffff0000, v{o}")
        e(f"  v_lshlrev_b32 v30, 16, v{o+2}")
        e(f"  v_and_b32 v31, 0xffff0000, v{o+2}")
        e(f"  v_sub_f32 v28, v24, v28")
        e(f"  v_sub_f32 v29, v25, v29")
        e(f"  v_sub_f32_e64 v30, -v26, v30")
        e(f"  v_sub_f32_e64 v31, -v27, v31")
        e(f"  v_cvt_pk_bf16_f32 v{o+1}, v28, v29")
        e(f"  v_cvt_pk_bf16_f32 v{o+3}, v30, v31")
        e(f"  s_mov_b32 s74, {i*4096}")
        e(f"  buffer_store_dword v{o}, v39, s[48:51], s74 offen")
        e(f"  buffer_store_dword v{o+2}, v39, s[48:51], s74 offen offset:2048")
        e(f"  buffer_store_dword v{o+1}, v39, s[52:55], s74 offen")
        e(f"  buffer_store_dword v{o+3}, v39, s[52:55], s74 offen offset:2048")
    if PROF: e("  s_waitcnt vmcnt(0)")
    stamp(6)
    stamp_flush(0, 7)
    e(f"{Lend}:")
    e("  s_endpgm")

def kernel2():
    K = "gm_phase2_kernel"
    STAMP["t"] = 6; STAMP["regs"] = [8,9,10,11,12,13,18,19]
    e(f".globl {K}\n.p2align 8\n.type {K},@function\n{K}:")
    Lend = "K2_end"; LB = "K2_typeB"
    e("  s_cmp_ge_u32 s2, 256")
    e(f"  s_cbranch_scc1 {Lend}")
    load_ptrs()
    e("  v_and_b32 v1, 63, v0")
    e("  v_lshrrev_b32 v2, 6, v0")
    e("  s_nop 0")
    e("  v_readfirstlane_b32 s56, v2")
    e("  v_and_b32 v3, 15, v1")
    e("  v_lshrrev_b32 v4, 4, v1")
    e("  s_and_b32 s60, s2, 127")
    e("  s_and_b32 s61, s60, 7")
    e("  s_lshr_b32 s62, s60, 3")
    e("  s_lshr_b32 s57, s61, 1")
    e("  s_lshl_b32 s57, s57, 2")
    e("  s_lshr_b32 s63, s62, 2")
    e("  s_add_u32 s57, s57, s63")
    e("  s_and_b32 s58, s61, 1")
    e("  s_lshl_b32 s58, s58, 2")
    e("  s_and_b32 s63, s62, 3")
    e("  s_add_u32 s58, s58, s63")
    e("  s_lshr_b32 s87, s56, 1")
    e("  s_and_b32 s88, s56, 1")
    e("  s_lshl_b32 s70, s56, 12")
    e("  s_waitcnt lgkmcnt(0)")
    stamp(0)
    V_RA0, V_RA1 = 20, 21
    e("  v_and_b32 v32, 7, v1")
    e("  v_xor_b32 v32, v32, v4")
    e("  v_lshlrev_b32 v32, 4, v32")
    e("  v_lshl_add_u32 v32, v3, 7, v32")
    e("  s_lshl_b32 s74, s87, 13")
    e(f"  v_add_u32 v{V_RA0}, s74, v32")
    e(f"  v_xor_b32 v{V_RA1}, 64, v{V_RA0}")
    e("  v_mov_b32 v31, v32")
    ACC = 64; FR = 128
    for i in range(64): e(f"  v_mov_b32 v{ACC+i}, 0")
    e("  s_mov_b32 s62, 0\n  s_mov_b32 s63, 0\n  s_mov_b32 s64, 0\n  s_mov_b32 s65, 0\n  s_mov_b32 s71, 0")
    def flat(fl):
        for f in fl:
            if isinstance(f, str): e("  " + f)
            else:
                for x in f: e("  " + x)
    def flat_dma(fl):
        for f in fl:
            if isinstance(f, str):
                e("  " + f)
            else:
                for x in f: e("  " + x)
    e("  s_cmp_ge_u32 s2, 128")
    e(f"  s_cbranch_scc1 {LB}")

    NB = 4; ST = 32768; D = 8; NST = 56
    V_DA = 8; V_DW = 12; V_RW = 24
    srd(40, P_WS, SZ_HMID, WS_HMID)
    srd(44, P_W2, 3584*2048)
    e(f"  s_mul_i32 s73, s57, {128*7168}")
    e("  s_lshl_b32 s75, s58, 8")
    for j in range(4):
        e(f"  s_lshl_b32 s74, s56, 8")
        e(f"  s_add_u32 s74, s74, {j*64}")
        e(f"  v_add_u32 v32, s74, v1")
        e(f"  v_lshrrev_b32 v33, 3, v32")
        e(f"  v_and_b32 v34, 7, v32")
        e(f"  v_and_b32 v35, 7, v33")
        e(f"  v_xor_b32 v34, v34, v35")
        e(f"  v_mul_u32_u24 v35, 7168, v33")
        e(f"  v_lshl_add_u32 v35, v34, 4, v35")
        e(f"  v_add_u32 v{V_DA+j}, s73, v35")
        e(f"  v_lshrrev_b32 v33, 4, v32")
        e(f"  v_bfe_u32 v34, v32, 1, 3")
        e(f"  v_and_b32 v35, 7, v33")
        e(f"  v_xor_b32 v34, v34, v35")
        e(f"  v_lshlrev_b32 v34, 5, v34")
        e(f"  v_and_b32 v35, 1, v32")
        e(f"  v_lshl_add_u32 v34, v35, 4, v34")
        e(f"  v_and_b32 v35, 0x33, v33")
        e(f"  v_bfe_u32 v36, v33, 2, 1")
        e(f"  v_lshl_or_b32 v35, v36, 3, v35")
        e(f"  v_bfe_u32 v36, v33, 3, 1")
        e(f"  v_lshl_or_b32 v35, v36, 2, v35")
        e(f"  v_lshl_add_u32 v35, v35, 11, v34")
        e(f"  v_add_u32 v{V_DW+j}, s75, v35")
    e("  v_bfe_u32 v32, v1, 5, 1")
    e("  v_lshlrev_b32 v32, 4, v32")
    e("  v_bfe_u32 v33, v1, 4, 1")
    e("  v_lshlrev_b32 v33, 2, v33")
    e("  v_bfe_u32 v34, v1, 2, 2")
    e("  v_add_u32 v33, v33, v34")
    e("  v_add_u32 v32, v32, v33")
    e("  v_lshlrev_b32 v32, 8, v32")
    e("  v_and_b32 v34, 3, v1")
    e("  v_lshl_add_u32 v32, v34, 3, v32")
    e("  v_add_u32 v32, 16384, v32")
    e("  s_lshl_b32 s74, s88, 2")
    for j in range(4):
        e(f"  s_add_u32 s75, s74, {j}")
        e(f"  v_xor_b32 v34, s75, v33")
        e(f"  v_lshl_add_u32 v{V_RW+j}, v34, 5, v32")
    V_PA, V_PB, V_DUM = 28, 29, 30
    e("  s_and_b32 s77, s56, 1")
    e("  s_lshl_b32 s77, s77, 6")
    e("  v_add_u32 v32, s77, v1")
    e("  v_mul_u32_u24 v33, 7168, v32")
    e("  v_add_u32 v33, s73, v33")
    e("  v_lshrrev_b32 v34, 1, v32")
    e("  v_lshlrev_b32 v34, 11, v34")
    e("  v_and_b32 v35, 1, v32")
    e("  v_lshl_add_u32 v34, v35, 7, v34")
    e("  s_lshl_b32 s75, s58, 8")
    e("  v_add_u32 v34, s75, v34")
    e("  s_cmp_lt_u32 s56, 2")
    e("  s_cselect_b32 s96, s40, s44")
    e("  s_cselect_b32 s97, s41, s45")
    e("  s_cselect_b32 s98, s42, s46")
    e("  s_mov_b32 s99, 0x00020000")
    e(f"  s_mov_b32 s90, {64*2048}")
    e(f"  s_cselect_b32 s90, 128, s90")
    e("  s_cselect_b64 vcc, -1, 0")
    e(f"  v_cndmask_b32 v{V_PA}, v34, v33, vcc")
    e(f"  s_mul_i32 s89, s90, {NB}")
    PFA = 0
    def pfA():
        return [f"buffer_load_dword v{V_DUM}, v{V_PA}, s[96:99], s89 offen", "s_add_u32 s89, s89, s90"]
    def dmaA0():
        f = []
        for j in range(4):
            f.append([f"s_add_u32 s79, s62, s70", f"s_add_u32 m0, s79, {j*1024}"] if j == 0 else [f"s_add_u32 m0, s79, {j*1024}"])
            f.append(f"buffer_load_dwordx4 v{V_DA+j}, s[40:43], s63 offen lds")
        return f
    def dmaA():
        f = []
        for j in range(4):
            f.append(f"s_add_u32 m0, s79, {16384+j*1024}")
            f.append(f"buffer_load_dwordx4 v{V_DW+j}, s[44:47], s64 offen lds")
        f.append(["s_add_u32 s63, s63, 128", f"s_add_u32 s64, s64, {64*2048}", "s_add_u32 s65, s65, 1"])
        f.append([f"s_add_u32 s62, s62, {ST}", f"s_cmp_ge_u32 s62, {NB*ST}", "s_cselect_b32 s62, 0, s62"])
        f.append([f"s_cmp_ge_u32 s65, {NST}", "s_cselect_b32 s42, 0, s42", "s_cselect_b32 s46, 0, s46"])
        return f
    def a_reads(st, u):
        va = V_RA1 if u else V_RA0
        b = FR + st*32
        r = [f"ds_read_b128 {vr(b+mt*4)}, v{va} offset:{mt*2048}" for mt in range(4)]
        for j in range(4):
            r.append(f"ds_read_b64_tr_b16 {vr(b+16+j*4,2)}, v{V_RW+j} offset:{u*8192}")
            r.append(f"ds_read_b64_tr_b16 {vr(b+18+j*4,2)}, v{V_RW+j} offset:{u*8192+2048}")
        return r
    def a_mfmas(st):
        b = FR + st*32
        return [f"v_mfma_f32_16x16x32_bf16 {vr(ACC+(j*4+mt)*4)}, {vr(b+16+j*4)}, {vr(b+mt*4)}, {vr(ACC+(j*4+mt)*4)}"
                for j in range(4) for mt in range(4)]
    def advA():
        return [["s_add_u32 s71, s71, 1", f"s_cmp_ge_u32 s71, {NB}", f"s_mov_b32 s72, {ST}", f"s_cselect_b32 s72, {-(NB-1)*ST & 0xffffffff}, s72", "s_cselect_b32 s71, 0, s71"]] + \
               [f"v_add_u32 v{x}, s72, v{x}" for x in (V_RA0, V_RA1, V_RW, V_RW+1, V_RW+2, V_RW+3)]
    for s in range(NB-1): flat(dmaA0() + dmaA())
    flat(dmaA0())
    srd(48, P_WS, SZ_G, WS_G)
    e("  s_lshl_b32 s74, s57, 7")
    e("  s_lshl_b32 s75, s87, 6")
    e("  s_add_u32 s74, s74, s75")
    e("  v_add_u32 v32, s74, v3")
    e("  v_lshlrev_b32 v33, 2, v32")
    for mt in range(4):
        e(f"  buffer_load_dword v{40+mt}, v33, s[48:51], 0 offen offset:{mt*64}")
    srd(52, P_WS, SZ_T, WS_T)
    e("  s_lshl_b32 s74, s58, 8")
    e("  s_lshl_b32 s75, s88, 7")
    e("  s_add_u32 s74, s74, s75")
    e("  v_lshlrev_b32 v34, 11, v32")
    e("  v_lshl_add_u32 v34, v4, 3, v34")
    e("  v_add_u32 v34, s74, v34")
    e(f"  s_waitcnt vmcnt({(NB-2)*D + D//2 + 4})")
    e("  s_barrier")
    stamp(1)
    flat(a_reads(0, 0))
    e("  s_mov_b32 s84, 0")
    Ll = Lbl.new("K2_A")
    e(f"{Ll}:")
    e("  s_waitcnt lgkmcnt(0)")
    interleave(a_mfmas(0), mix(a_reads(1, 1), dmaA()), 0.95)
    e(f"  s_waitcnt vmcnt({(NB-2)*D}) lgkmcnt(0)")
    e("  s_barrier")
    interleave(a_mfmas(1), advA() + mix(a_reads(0, 0), dmaA0()), 0.95)
    e("  s_add_u32 s84, s84, 1")
    e(f"  s_cmp_lt_u32 s84, {NST}")
    e(f"  s_cbranch_scc1 {Ll}")
    stamp(2)
    for mt in range(4):
        e(f"  v_sub_f32 v{40+mt}, 1.0, v{40+mt}")
        bf16_round(40+mt, 40+mt, 44)
    for mt in range(4):
        if mt: e(f"  v_add_u32 v34, {16*2048}, v34")
        for j in range(4):
            a = ACC + (j*4+mt)*4
            e(f"  v_cvt_pk_bf16_f32 v44, v{a}, v{a+1}")
            e(f"  v_cvt_pk_bf16_f32 v45, v{a+2}, v{a+3}")
            for i, (src, hi) in enumerate(((44,0),(44,1),(45,0),(45,1))):
                if hi: e(f"  v_and_b32 v{46+i}, 0xffff0000, v{src}")
                else:  e(f"  v_lshlrev_b32 v{46+i}, 16, v{src}")
            for i in range(4): e(f"  v_mul_f32 v{46+i}, v{46+i}, v{40+mt}")
            t = 50 + (j % 4)*2
            e(f"  v_cvt_pk_bf16_f32 v{t}, v46, v47")
            e(f"  v_cvt_pk_bf16_f32 v{t+1}, v48, v49")
            e(f"  buffer_store_dwordx2 {vr(t,2)}, v34, s[52:55], 0 offen offset:{j*32} sc0 sc1")
    e("  s_waitcnt vmcnt(0)")
    stamp(3)
    stamp_flush(1, 4)
    e("  s_barrier")
    e("  s_cmp_lg_u32 s56, 0")
    e(f"  s_cbranch_scc1 {Lend}")
    srd(48, P_DBG, 256)
    e("  s_lshr_b32 s74, s60, 1")
    e("  s_lshl_b32 s74, s74, 2")
    e("  s_and_b32 s75, s60, 1")
    e("  s_lshl_b32 s75, 1, s75")
    e("  s_mov_b64 exec, 1")
    e("  v_mov_b32 v20, s75")
    e("  v_mov_b32 v21, 0")
    e("  buffer_atomic_or v20, v21, s[48:51], s74 offen sc1")
    e(f"  s_branch {Lend}")

    e(f"{LB}:")
    NB = 3; ST = 49152; D = 12; NST = 32
    V_DA = 8; V_DW = 12; V_RW0, V_RW1 = 24, 25
    srd(40, P_WS, SZ_H, WS_HHI)
    srd(48, P_WS, SZ_H, WS_HLO)
    srd(44, P_CRE, 1024*2048)
    e("  s_lshl_b32 s73, s57, 19")
    e("  s_lshl_b32 s75, s58, 18")
    for j in range(4):
        e(f"  s_lshl_b32 s74, s56, 8")
        e(f"  s_add_u32 s74, s74, {j*64}")
        e(f"  v_add_u32 v32, s74, v1")
        e(f"  v_lshrrev_b32 v33, 3, v32")
        e(f"  v_and_b32 v34, 7, v32")
        e(f"  v_and_b32 v35, 7, v33")
        e(f"  v_xor_b32 v34, v34, v35")
        e(f"  v_lshlrev_b32 v34, 4, v34")
        e(f"  v_lshl_add_u32 v35, v33, 12, v34")
        e(f"  v_add_u32 v{V_DA+j}, s73, v35")
        e(f"  v_lshl_add_u32 v35, v33, 11, v34")
        e(f"  v_add_u32 v{V_DW+j}, s75, v35")
    e("  s_lshl_b32 s74, s88, 13")
    e("  s_add_u32 s74, s74, 32768")
    e(f"  v_add_u32 v{V_RW0}, s74, v31")
    e(f"  v_xor_b32 v{V_RW1}, 64, v{V_RW0}")
    V_PA, V_PB, V_DUM = 28, 29, 30
    e("  s_and_b32 s77, s56, 1")
    e("  s_lshl_b32 s77, s77, 6")
    e("  v_add_u32 v32, s77, v1")
    e("  v_lshlrev_b32 v33, 12, v32")
    e(f"  v_add_u32 v{V_PA}, s73, v33")
    e("  v_lshlrev_b32 v33, 11, v32")
    e(f"  v_add_u32 v{V_PB}, s75, v33")
    e("  s_cmp_lt_u32 s56, 2")
    e("  s_cselect_b32 s96, s40, s48")
    e("  s_cselect_b32 s97, s41, s49")
    e("  s_mov_b32 s98, s42")
    e("  s_mov_b32 s99, 0x00020000")
    srd(92, P_CRE, 1024*2048)
    PFB = 0
    e(f"  s_mov_b32 s89, {NB*128}")
    e(f"  s_mov_b32 s90, {NB*128}")
    e(f"  s_mov_b32 s91, {NB}")
    def pfB():
        return [f"buffer_load_dword v{V_DUM}, v{V_PA}, s[96:99], s89 offen",
                f"buffer_load_dword v{V_DUM}, v{V_PB}, s[92:95], s90 offen",
                ["s_add_u32 s89, s89, 128", "s_add_u32 s90, s90, 128", "s_add_u32 s91, s91, 1"],
                ["s_cmp_eq_u32 s91, 16", f"s_cselect_b32 s92, s{P_CIM}, s92", f"s_cselect_b32 s93, s{P_CIM+1}, s93", "s_cselect_b32 s90, 0, s90"]]
    def EARLY_B():
        srd(52, P_WS, SZ_G, WS_G)
        e("  s_lshl_b32 s74, s57, 7")
        e("  s_lshl_b32 s77, s87, 6")
        e("  s_add_u32 s74, s74, s77")
        e("  v_add_u32 v32, s74, v3")
        e("  v_lshlrev_b32 v33, 2, v32")
        for mt in range(4):
            e(f"  buffer_load_dword v{40+mt}, v33, s[52:55], 0 offen offset:{mt*64}")
        srd(52, P_DSK, 2048)
        e("  s_lshl_b32 s74, s58, 8")
        e("  s_lshl_b32 s77, s88, 7")
        e("  s_add_u32 s74, s74, s77")
        e("  v_lshl_add_u32 v35, v4, 3, s74")
        for j in range(4):
            e(f"  buffer_load_dwordx2 v[{44+2*j}:{45+2*j}], v35, s[52:55], 0 offen offset:{j*32}")
        e("  v_lshl_add_u32 v36, v32, 11, v35")
        srd(52, P_X, 2048*2048)
        for mt in range(4):
            for j in range(4):
                r = 224 + (mt*4+j)*2
                e(f"  s_mov_b32 s74, {mt*16*2048}")
                e(f"  buffer_load_dwordx2 v[{r}:{r+1}], v36, s[52:55], s74 offen offset:{j*32}")
    def dmaB0():
        f = []
        for j in range(4):
            f.append([f"s_add_u32 s79, s62, s70", f"s_add_u32 m0, s79, {j*1024}"] if j == 0 else [f"s_add_u32 m0, s79, {j*1024}"])
            f.append(f"buffer_load_dwordx4 v{V_DA+j}, s[40:43], s63 offen lds")
        for j in range(2):
            f.append(f"s_add_u32 m0, s79, {16384+j*1024}")
            f.append(f"buffer_load_dwordx4 v{V_DA+j}, s[48:51], s63 offen lds")
        return f
    def dmaB():
        f = []
        for j in range(2, 4):
            f.append(f"s_add_u32 m0, s79, {16384+j*1024}")
            f.append(f"buffer_load_dwordx4 v{V_DA+j}, s[48:51], s63 offen lds")
        for j in range(4):
            f.append(f"s_add_u32 m0, s79, {32768+j*1024}")
            f.append(f"buffer_load_dwordx4 v{V_DW+j}, s[44:47], s64 offen lds")
        f.append(["s_add_u32 s63, s63, 128", "s_add_u32 s64, s64, 128", "s_add_u32 s65, s65, 1"])
        f.append([f"s_add_u32 s62, s62, {ST}", f"s_cmp_ge_u32 s62, {NB*ST}", "s_cselect_b32 s62, 0, s62"])
        f.append(["s_cmp_eq_u32 s65, 16", f"s_cselect_b32 s44, s{P_CIM}, s44", f"s_cselect_b32 s45, s{P_CIM+1}, s45", "s_cselect_b32 s64, 0, s64"])
        f.append([f"s_cmp_ge_u32 s65, {NST}", "s_cselect_b32 s42, 0, s42", "s_cselect_b32 s46, 0, s46", "s_cselect_b32 s50, 0, s50"])
        return f
    def b_reads(st, u):
        va = V_RA1 if u else V_RA0; vw = V_RW1 if u else V_RW0
        b = FR + st*48
        r = [f"ds_read_b128 {vr(b+32+j*4)}, v{vw} offset:{j*2048}" for j in range(4)]
        r += [f"ds_read_b128 {vr(b+mt*4)}, v{va} offset:{mt*2048}" for mt in range(4)]
        r += [f"ds_read_b128 {vr(b+16+mt*4)}, v{va} offset:{16384+mt*2048}" for mt in range(4)]
        return r
    def b_mfmas(st):
        b = FR + st*48
        m = []
        for hl in range(2):
            for j in range(4):
                for mt in range(4):
                    acc = vr(ACC+(j*4+mt)*4)
                    m.append(f"v_mfma_f32_16x16x32_bf16 {acc}, {vr(b+32+j*4)}, {vr(b+hl*16+mt*4)}, {acc}")
        return m
    def advB():
        return [["s_add_u32 s71, s71, 1", f"s_cmp_ge_u32 s71, {NB}", f"s_mov_b32 s72, {ST}", f"s_cselect_b32 s72, {-(NB-1)*ST & 0xffffffff}, s72", "s_cselect_b32 s71, 0, s71"]] + \
               [f"v_add_u32 v{x}, s72, v{x}" for x in (V_RA0, V_RA1, V_RW0, V_RW1)]
    for s in range(NB-1): flat(dmaB0() + dmaB())
    flat(dmaB0())
    EARLY_B()
    e(f"  s_waitcnt vmcnt({(NB-2)*D + D//2 + 24})")
    e("  s_barrier")
    stamp(1)
    flat(b_reads(0, 0))
    e("  s_mov_b32 s84, 0")
    Ll = Lbl.new("K2_B")
    e(f"{Ll}:")
    e("  s_waitcnt lgkmcnt(0)")
    interleave(b_mfmas(0), mix(b_reads(1, 1), dmaB()), 0.9)
    e(f"  s_waitcnt vmcnt({(NB-2)*D}) lgkmcnt(0)")
    e("  s_barrier")
    interleave(b_mfmas(1), advB() + mix(b_reads(0, 0), dmaB0()), 0.9)
    e("  s_add_u32 s84, s84, 1")
    e(f"  s_cmp_lt_u32 s84, {NST}")
    e(f"  s_cbranch_scc1 {Ll}")
    stamp(2)
    for j in range(4):
        for i in range(4):
            src = 44+2*j+(i >> 1)
            if i & 1: e(f"  v_and_b32 v{192+j*4+i}, 0xffff0000, v{src}")
            else:     e(f"  v_lshlrev_b32 v{192+j*4+i}, 16, v{src}")
    for mt in range(4):
        for j in range(4):
            a = ACC + (j*4+mt)*4; xr = 224 + (mt*4+j)*2
            for i in range(4):
                src = xr + (i >> 1)
                if i & 1: e(f"  v_and_b32 v{52+i}, 0xffff0000, v{src}")
                else:     e(f"  v_lshlrev_b32 v{52+i}, 16, v{src}")
            e(f"  v_pk_mul_f32 v[52:53], v[52:53], v[{192+j*4}:{193+j*4}]")
            e(f"  v_pk_mul_f32 v[54:55], v[54:55], v[{194+j*4}:{195+j*4}]")
            e(f"  v_cvt_pk_bf16_f32 v56, v52, v53")
            e(f"  v_cvt_pk_bf16_f32 v57, v54, v55")
            for i, (src, hi) in enumerate(((56,0),(56,1),(57,0),(57,1))):
                if hi: e(f"  v_and_b32 v{52+i}, 0xffff0000, v{src}")
                else:  e(f"  v_lshlrev_b32 v{52+i}, 16, v{src}")
            for i in range(4): e(f"  v_fma_f32 v{a+i}, 2.0, v{a+i}, v{52+i}")
            for i in range(4): e(f"  v_mul_f32 v{a+i}, v{a+i}, v{40+mt}")
    srd(48, P_DBG, 256)
    srd(52, P_WS, SZ_T, WS_T)
    e("  s_lshr_b32 s74, s60, 1")
    e("  s_lshl_b32 s74, s74, 2")
    e("  s_and_b32 s75, s60, 1")
    e("  s_lshl_b32 s75, 1, s75")
    e("  s_mov_b32 s78, 0")
    e("  v_mov_b32 v37, 0")
    Lp = Lbl.new("K2_poll"); Lg = Lbl.new("K2_got")
    e(f"{Lp}:")
    e("  buffer_load_dword v38, v37, s[48:51], s74 offen sc1")
    e("  s_waitcnt vmcnt(0)")
    e("  v_readfirstlane_b32 s79, v38")
    e("  s_add_u32 s78, s78, 1")
    e("  s_and_b32 s79, s79, s75")
    e(f"  s_cbranch_scc1 {Lg}")
    e("  s_cmp_gt_u32 s78, 0x100000")
    e(f"  s_cbranch_scc1 {Lg}")
    e("  s_sleep 1")
    e(f"  s_branch {Lp}")
    e(f"{Lg}:")
    stamp(3)
    for mt in range(4):
        for j in range(4):
            r = 160 + (mt*4+j)*2
            e(f"  s_mov_b32 s74, {mt*16*2048}")
            e(f"  buffer_load_dwordx2 v[{r}:{r+1}], v36, s[52:55], s74 offen offset:{j*32} sc0 sc1")
    srd(48, P_OUT, 2048*1024*4)
    e("  v_lshlrev_b32 v36, 1, v36")
    for mt in range(4):
        for j in range(4):
            a = ACC + (j*4+mt)*4; tr = 160 + (mt*4+j)*2
            e(f"  s_waitcnt vmcnt({15 - (mt*4+j) + (mt*4+j)})") if False else None
            e(f"  s_waitcnt vmcnt({15})") if (mt*4+j) == 0 else None
            for i in range(4):
                src = tr + (i >> 1)
                if i & 1: e(f"  v_and_b32 v{56+i}, 0xffff0000, v{src}")
                else:     e(f"  v_lshlrev_b32 v{56+i}, 16, v{src}")
            e(f"  v_pk_add_f32 v[{a}:{a+1}], v[{a}:{a+1}], v[56:57]")
            e(f"  v_pk_add_f32 v[{a+2}:{a+3}], v[{a+2}:{a+3}], v[58:59]")
            e(f"  s_mov_b32 s74, {mt*16*4096}")
            e(f"  buffer_store_dwordx4 {vr(a)}, v36, s[48:51], s74 offen offset:{j*64}")
            if (mt*4+j) < 15: e(f"  s_waitcnt vmcnt(15)")
    if PROF: e("  s_waitcnt vmcnt(0)")
    stamp(4)
    stamp_flush(1, 5)
    e(f"{Lend}:")
    e("  s_endpgm")

def desc(name, vgpr, accum):
    e(f".amdhsa_kernel {name}")
    e(f"  .amdhsa_next_free_vgpr {vgpr}")
    e("  .amdhsa_next_free_sgpr 102")
    e(f"  .amdhsa_accum_offset {accum}")
    e("  .amdhsa_group_segment_fixed_size 0")
    e("  .amdhsa_kernarg_size 136")
    e("  .amdhsa_user_sgpr_count 2")
    e("  .amdhsa_user_sgpr_kernarg_segment_ptr 1")
    e("  .amdhsa_system_sgpr_workgroup_id_x 1")
    e(".end_amdhsa_kernel")

def main():
    hdr = open("gated_mix__ssm_conv_s5__glu_gated_swiglu__prompt.s.ref").read().split("\n")
    for l in hdr:
        if l.startswith("; @launch"): break
        e(l)
    e("; @launch kernel=gm_phase1_kernel grid=(256,1,1) block=(256,1,1) lds=139264")
    e("; @launch kernel=gm_phase2_kernel grid=(256,1,1) block=(256,1,1) lds=147456")
    e('.amdgcn_target "amdgcn-amd-amdhsa--gfx950"')
    e(".text")
    kernel1()
    kernel2()
    e('.section .rodata,"a"')
    e(".p2align 6")
    desc("gm_phase1_kernel", 512, 256)
    e(".p2align 6")
    desc("gm_phase2_kernel", 256, 256)
    open(sys.argv[1] if len(sys.argv) > 1 else "gated_mix__ssm_conv_s5__glu_gated_swiglu__prompt.s", "w").write("\n".join(OUT) + "\n")

main()
```

```python
import sys

OUT = []
def e(s=""):
    if OUT and " lds" in s and s.strip().startswith("buffer_load") and " m0," in OUT[-1]:
        OUT.append("  s_nop 0")
    OUT.append(s)

class Lbl:
    n = 0
    @staticmethod
    def new(p="L"):
        Lbl.n += 1
        return f"{p}_{Lbl.n}"

WS_HMID = 0x0;        SZ_HMID = 2048*3584*2
WS_HHI  = 0x1000000;  SZ_H = 2048*2048*2
WS_HLO  = 0x1800000
WS_T    = 0x2000000;  SZ_T = 2048*1024*2
WS_G    = 0x2400000;  SZ_G = 2048*4
WS_AGG  = 0x2410000;  SZ_AGG = 8*512*16

P_X, P_LRE, P_LIM, P_BRE, P_BIM, P_CRE, P_CIM, P_LDT = 4, 6, 8, 10, 12, 14, 16, 18
P_DSK, P_BX, P_W1, P_W3, P_W2, P_GW, P_OUT, P_DBG = 20, 22, 24, 26, 28, 30, 32, 34
P_WS = 36

def srd(d, p, nbytes, off=0):
    if off:
        e(f"  s_add_u32 s{d}, s{p}, 0x{off:x}")
        e(f"  s_addc_u32 s{d+1}, s{p+1}, 0")
    else:
        e(f"  s_mov_b32 s{d}, s{p}")
        e(f"  s_mov_b32 s{d+1}, s{p+1}")
    e(f"  s_mov_b32 s{d+2}, 0x{nbytes:x}")
    e(f"  s_mov_b32 s{d+3}, 0x00020000")

def load_ptrs():
    e("  s_load_dwordx16 s[4:19], s[0:1], 0")
    e("  s_load_dwordx16 s[20:35], s[0:1], 64")
    e("  s_load_dwordx2 s[36:37], s[0:1], 128")

def vr(b, n=4): return f"v[{b}:{b+n-1}]"
def ar(b, n=4): return f"a[{b}:{b+n-1}]"

def interleave(mfmas, fillers, frac=0.8):
    M = len(mfmas); F = len(fillers)
    span = max(1, int(M*frac))
    done = 0
    for i, m in enumerate(mfmas):
        e("  " + m)
        want = min(F, ((i+1)*F + span - 1)//span)
        while done < want:
            f = fillers[done]; done += 1
            if isinstance(f, str): e("  " + f)
            else:
                for x in f: e("  " + x)
    while done < F:
        f = fillers[done]; done += 1
        if isinstance(f, str): e("  " + f)
        else:
            for x in f: e("  " + x)

PROF = len(sys.argv) > 2 and sys.argv[2] == "prof"
import os
EXP = os.environ.get("EXP", "")
STAMP = dict(t=14, regs=[16,17,20,21,22,23,28,29,32,33])
def stamp(i):
    if not PROF: return
    t = STAMP["t"]
    e(f"  s_memtime s[{t}:{t+1}]")
    e("  s_waitcnt lgkmcnt(0)")
    e(f"  s_mov_b32 s{STAMP['regs'][i]}, s{t}")
def stamp_flush(kid, n):
    if not PROF: return
    srd(48, P_WS, 0x100000, 0x3000000 + kid*0x10000)
    t = STAMP["t"]
    e(f"  s_lshl_b32 s{t}, s2, 8")
    e(f"  s_lshl_b32 s{t+1}, s56, 6")
    e(f"  s_add_u32 s{t}, s{t}, s{t+1}")
    e("  v_mov_b32 v251, 0")
    for i in range(n):
        e(f"  v_mov_b32 v250, s{STAMP['regs'][i]}")
        e(f"  buffer_store_dword v250, v251, s[48:51], s{t} offen offset:{i*4}")
        e("  s_waitcnt vmcnt(0)")

def bf16_round(dst, src, tmp):
    e(f"  v_cvt_pk_bf16_f32 v{tmp}, v{src}, v{src}")
    e(f"  v_lshlrev_b32 v{dst}, 16, v{tmp}")

def mix(reads, dma):
    groups = []
    i = 0
    while i < len(dma):
        f = dma[i]
        txt = f if isinstance(f, str) else " ".join(f)
        if " m0," in txt and i + 1 < len(dma):
            groups.append([dma[i], dma[i+1]]); i += 2
        else:
            groups.append([dma[i]]); i += 1
    out = []
    n = len(reads); g = len(groups)
    gi = 0
    for k, r in enumerate(reads):
        out.append(r)
        want = ((k+1)*g)//n
        while gi < want:
            out += groups[gi]; gi += 1
    while gi < g:
        out += groups[gi]; gi += 1
    return out

def flat(fl):
    for f in fl:
        if isinstance(f, str): e("  " + f)
        else:
            for x in f: e("  " + x)

def kernel1():
    K = "gm_phase1_kernel"
    e(f".globl {K}\n.p2align 8\n.type {K},@function\n{K}:")
    Lend = "K1_end"
    e("  s_cmp_ge_u32 s2, 256")
    e(f"  s_cbranch_scc1 {Lend}")
    load_ptrs()
    e("  v_and_b32 v1, 63, v0")
    e("  v_lshrrev_b32 v2, 6, v0")
    e("  s_nop 0")
    e("  v_readfirstlane_b32 s56, v2")
    e("  v_and_b32 v3, 15, v1")
    e("  v_lshrrev_b32 v4, 4, v1")
    e("  s_lshr_b32 s57, s2, 3")
    e("  s_and_b32 s57, s57, 7")
    e("  s_and_b32 s58, s2, 7")
    e("  s_lshl_b32 s58, s58, 2")
    e("  s_lshr_b32 s59, s2, 6")
    e("  s_add_u32 s58, s58, s59")
    NBUF = 4; STG = 34816; D = 9
    OFF_W = 16384; OFF_S = 30720
    V_DA = 8
    V_DW = 12
    V_DS = 16
    V_RA = 17; V_RW = 18; V_RS = 19
    AFR = 32
    SACC = 64
    GACC = 128
    UACC = 0
    FR = 112
    TMP = 20
    e("  s_lshl_b32 s73, s57, 19")
    for j in range(4):
        e(f"  s_lshl_b32 s74, s56, 8")
        e(f"  s_add_u32 s74, s74, {j*64}")
        e(f"  v_add_u32 v20, s74, v1")
        e(f"  v_lshrrev_b32 v21, 2, v20")
        e(f"  v_and_b32 v22, 3, v20")
        e(f"  v_bfe_u32 v23, v21, 3, 1")
        e(f"  v_mul_u32_u24 v23, 3, v23")
        e(f"  v_xor_b32 v22, v22, v23")
        e(f"  v_lshlrev_b32 v21, 11, v21")
        e(f"  v_lshl_add_u32 v21, v22, 4, v21")
        e(f"  v_add_u32 v{V_DA+j}, s73, v21")
    e("  s_mul_i32 s75, s58, 224")
    e("  s_and_b32 s76, s56, 1")
    e("  s_lshl_b32 s76, s76, 2")
    e("  s_lshr_b32 s77, s56, 1")
    e("  s_mul_i32 s77, s77, 7168")
    e(f"  s_add_u32 s77, s77, {OFF_W}")
    for j in range(4):
        e(f"  s_add_u32 s74, s76, {j}")
        e(f"  s_min_u32 s74, s74, 6")
        e(f"  s_lshl_b32 s78, s74, 10")
        e(f"  s_add_u32 s{66+j}, s78, s77")
        e(f"  s_lshl_b32 s74, s74, 6")
        e(f"  v_add_u32 v20, s74, v1")
        e(f"  v_mul_u32_u24 v21, 4682, v20")
        e(f"  v_lshrrev_b32 v21, 16, v21")
        e(f"  v_mul_u32_u24 v22, 14, v21")
        e(f"  v_sub_u32 v22, v20, v22")
        e(f"  v_and_b32 v23, 0x13, v21")
        e(f"  v_bfe_u32 v24, v21, 2, 1")
        e(f"  v_lshl_or_b32 v23, v24, 3, v23")
        e(f"  v_bfe_u32 v24, v21, 3, 1")
        e(f"  v_lshl_or_b32 v23, v24, 2, v23")
        e(f"  v_mul_u32_u24 v23, 7168, v23")
        e(f"  v_lshl_add_u32 v23, v22, 4, v23")
        e(f"  v_add_u32 v{V_DW+j}, s75, v23")
    e("  s_lshl_b32 s74, s56, 6")
    e("  v_add_u32 v20, s74, v1")
    e("  v_lshrrev_b32 v21, 2, v20")
    e("  v_and_b32 v22, 3, v20")
    e("  v_bfe_u32 v23, v21, 3, 1")
    e("  v_mul_u32_u24 v23, 3, v23")
    e("  v_xor_b32 v22, v22, v23")
    e("  v_and_b32 v21, 31, v21")
    e("  v_lshlrev_b32 v21, 11, v21")
    e("  v_lshl_add_u32 v21, v22, 4, v21")
    e("  s_lshl_b32 s74, s58, 16")
    e(f"  v_add_u32 v{V_DS}, s74, v21")
    e("  s_lshl_b32 s70, s56, 12")
    e("  s_lshl_b32 s80, s56, 10")
    e(f"  s_add_u32 s80, s80, {OFF_S}")
    e("  v_bfe_u32 v20, v1, 3, 1")
    e("  v_mul_u32_u24 v20, 3, v20")
    e("  v_xor_b32 v20, v20, v4")
    e("  v_lshlrev_b32 v20, 4, v20")
    e("  v_lshl_add_u32 v20, v3, 6, v20")
    e(f"  v_add_u32 v{V_RA}, s70, v20")
    e(f"  v_add_u32 v{V_RS}, {OFF_S}, v20")
    e("  v_bfe_u32 v20, v1, 5, 1")
    e("  v_lshlrev_b32 v20, 4, v20")
    e("  v_bfe_u32 v21, v1, 4, 1")
    e("  v_lshl_add_u32 v20, v21, 2, v20")
    e("  v_bfe_u32 v21, v1, 2, 2")
    e("  v_add_u32 v20, v20, v21")
    e("  v_mul_u32_u24 v20, 224, v20")
    e("  v_and_b32 v21, 3, v1")
    e("  v_lshl_add_u32 v20, v21, 3, v20")
    e(f"  v_add_u32 v{V_RW}, {OFF_W}, v20")
    for r in (62, 63, 64, 65, 71): e(f"  s_mov_b32 s{r}, 0")
    e("  s_waitcnt lgkmcnt(0)")
    stamp(0)
    srd(40, P_X, 2048*2048)
    e("  s_cmp_lt_u32 s56, 2")
    e(f"  s_cselect_b32 s44, s{P_W1}, s{P_W3}")
    e(f"  s_cselect_b32 s45, s{P_W1+1}, s{P_W3+1}")
    e(f"  s_mov_b32 s46, 0x{1024*7168:x}")
    e("  s_mov_b32 s47, 0x00020000")
    e(f"  s_cselect_b32 s96, s{P_BRE}, s{P_BIM}")
    e(f"  s_cselect_b32 s97, s{P_BRE+1}, s{P_BIM+1}")
    e(f"  s_mov_b32 s98, 0x{1024*2048:x}")
    e("  s_mov_b32 s99, 0x00020000")

    def dma_stage():
        f = []
        for j in range(4):
            f.append([f"s_add_u32 s79, s62, s70", f"s_add_u32 m0, s79, {j*1024}"] if j == 0 else [f"s_add_u32 m0, s79, {j*1024}"])
            f.append(f"buffer_load_dwordx4 v{V_DA+j}, s[40:43], s63 offen lds")
        for j in range(4):
            f.append(f"s_add_u32 m0, s62, s{66+j}")
            f.append(f"buffer_load_dwordx4 v{V_DW+j}, s[44:47], s64 offen lds")
        f.append(f"s_add_u32 m0, s62, s80")
        f.append(f"buffer_load_dwordx4 v{V_DS}, s[96:99], s63 offen lds")
        f.append(["s_add_u32 s63, s63, 64", f"s_add_u32 s64, s64, {32*7168}", "s_add_u32 s65, s65, 1"])
        f.append([f"s_add_u32 s62, s62, {STG}", f"s_cmp_ge_u32 s62, {NBUF*STG}", "s_cselect_b32 s62, 0, s62"])
        f.append(["s_cmp_ge_u32 s65, 32", "s_cselect_b32 s42, 0, s42", "s_cselect_b32 s46, 0, s46", "s_cselect_b32 s98, 0, s98"])
        return f
    flat(dma_stage())
    srd(48, P_GW, 2048)
    e("  s_lshl_b32 s60, s2, 3")
    e("  s_lshl_b32 s61, s56, 1")
    e("  s_add_u32 s60, s60, s61")
    e("  s_lshl_b32 s61, s60, 11")
    e("  v_lshlrev_b32 v5, 5, v1")
    e("  buffer_load_dwordx4 v[20:23], v5, s[48:51], 0 offen")
    e("  buffer_load_dwordx4 v[24:27], v5, s[48:51], 0 offen offset:16")
    e("  buffer_load_dwordx4 v[240:243], v5, s[40:43], s61 offen")
    e("  buffer_load_dwordx4 v[244:247], v5, s[40:43], s61 offen offset:16")
    e("  buffer_load_dwordx4 v[248:251], v5, s[40:43], s61 offen offset:2048")
    e("  buffer_load_dwordx4 v[252:255], v5, s[40:43], s61 offen offset:2064")
    zer = []
    for i in range(112):
        zer.append(f"v_mov_b32 v{GACC+i}, 0")
        zer.append(f"v_accvgpr_write_b32 a{UACC+i}, 0")
    for i in range(64): zer.append(f"v_mov_b32 v{SACC+i}, 0")
    dl = []
    for s_ in range(NBUF-1): dl += dma_stage()
    interleave(zer, dl, 1.0)

    def g_compute():
        for row in range(2):
            e(f"  v_mov_b32 v{28+row}, 0")
            for d in range(8):
                xv = 240 + row*8 + d; gv = 20 + d
                e(f"  v_lshlrev_b32 v32, 16, v{xv}")
                e(f"  v_lshlrev_b32 v33, 16, v{gv}")
                e(f"  v_and_b32 v34, 0xffff0000, v{xv}")
                e(f"  v_and_b32 v35, 0xffff0000, v{gv}")
                e(f"  v_pk_mul_f32 v[32:33], v[32:33], v[32:33] op_sel:[0,1] op_sel_hi:[0,1]") if False else None
                e(f"  v_mul_f32 v32, v32, v33")
                e(f"  v_mul_f32 v34, v34, v35")
                e(f"  v_cvt_pk_bf16_f32 v32, v32, v34")
                e(f"  v_lshlrev_b32 v33, 16, v32")
                e(f"  v_and_b32 v34, 0xffff0000, v32")
                e(f"  v_add_f32 v{28+row}, v{28+row}, v33")
                e(f"  v_add_f32 v{28+row}, v{28+row}, v34")
        for off in (0x041F, 0x081F, 0x101F, 0x201F, 0x401F):
            e(f"  ds_swizzle_b32 v30, v28 offset:0x{off:04X}")
            e(f"  ds_swizzle_b32 v31, v29 offset:0x{off:04X}")
            e("  s_waitcnt lgkmcnt(0)")
            e("  v_add_f32 v28, v28, v30")
            e("  v_add_f32 v29, v29, v31")
        e("  s_nop 1")
        e("  v_readlane_b32 s81, v28, 32")
        e("  v_readlane_b32 s82, v29, 32")
        e("  s_nop 1")
        e("  v_add_f32 v28, s81, v28")
        e("  v_add_f32 v29, s82, v29")
        srd(48, P_WS, SZ_G, WS_G)
        for row in range(2):
            v = 28 + row
            bf16_round(v, v, 32)
            e(f"  v_mul_f32 v33, 0xbfb8aa3b, v{v}")
            e(f"  v_exp_f32 v33, v33")
            e("  s_nop 0")
            e(f"  v_add_f32 v33, 1.0, v33")
            e(f"  v_rcp_f32 v33, v33")
            e("  s_nop 0")
            bf16_round(v, 33, 32)
        e("  s_lshl_b32 s61, s60, 2")
        e("  v_mov_b32 v33, 0")
        e("  s_mov_b64 s[82:83], exec")
        e("  s_mov_b64 exec, 1")
        e("  buffer_store_dword v28, v33, s[48:51], s61 offen")
        e("  buffer_store_dword v29, v33, s[48:51], s61 offen offset:4")
        e("  s_mov_b64 exec, s[82:83]")

    def f_act(st, mt): return AFR + st*16 + mt*4
    def f_w(st, nt): return FR + st*72 + nt*4
    def reads(st):
        r = []
        for mt in range(4):
            r.append(f"ds_read_b128 {vr(f_act(st,mt))}, v{V_RA} offset:{mt*1024}")
        for nt in range(14):
            base = (nt % 7)*32 + (7168 if nt >= 7 else 0)
            b = f_w(st, nt)
            r.append(f"ds_read_b64_tr_b16 {ar(b,2)}, v{V_RW} offset:{base}")
            r.append(f"ds_read_b64_tr_b16 {ar(b+2,2)}, v{V_RW} offset:{base+8*224}")
        for q in range(4):
            r.append(f"ds_read_b128 {ar(f_w(st,14+q))}, v{V_RS} offset:{q*1024}")
        return r
    def mfmas(st):
        m = []
        for nt in range(18):
            for mt in range(4):
                if nt < 7: acc = vr(GACC + (nt*4+mt)*4)
                elif nt < 14: acc = ar(UACC + ((nt-7)*4+mt)*4)
                else: acc = vr(SACC + ((nt-14)*4+mt)*4)
                m.append(f"v_mfma_f32_16x16x32_bf16 {acc}, {ar(f_w(st,nt))}, {vr(f_act(st,mt))}, {acc}")
        return m
    def adv_read():
        return [["s_add_u32 s71, s71, 1", f"s_cmp_ge_u32 s71, {NBUF}", f"s_mov_b32 s72, {STG}", f"s_cselect_b32 s72, {-(NBUF-1)*STG & 0xffffffff}, s72", "s_cselect_b32 s71, 0, s71"],
                f"v_add_u32 v{V_RA}, s72, v{V_RA}", f"v_add_u32 v{V_RW}, s72, v{V_RW}", f"v_add_u32 v{V_RS}, s72, v{V_RS}"]
    e(f"  s_waitcnt vmcnt({(NBUF-1)*D + 6})")
    e("  s_barrier")
    stamp(1)
    flat(reads(0))
    e("  s_mov_b32 s84, 0")
    Lloop = Lbl.new("K1_main")
    e(f"{Lloop}:")
    for half in range(2):
        e(f"  s_waitcnt vmcnt({(NBUF-2)*D}) lgkmcnt(0)")
        if "nobar" not in EXP: e("  s_barrier")
        fl = adv_read() + mix(reads(1-half), dma_stage())
        interleave(mfmas(half), fl, 0.95)
    e("  s_add_u32 s84, s84, 1")
    e("  s_cmp_lt_u32 s84, 16")
    e(f"  s_cbranch_scc1 {Lloop}")
    e("  s_waitcnt vmcnt(0) lgkmcnt(0)")
    e("  s_barrier")
    stamp(2)
    g_compute()

    UST = 272; EOFF = 69632
    e("  s_lshl_b32 s74, s56, 6")
    e("  v_add_u32 v20, s74, v3")
    e(f"  v_mul_u32_u24 v20, {UST}, v20")
    e("  v_lshl_add_u32 v20, v4, 4, v20")
    for p in range(2):
        for j in range(2):
            for mt in range(4):
                e(f"  ds_write_b128 v20, {vr(SACC + p*32 + (j*4+mt)*4)} offset:{mt*16*UST + j*64 + p*128}")
    e("  s_lshl_b32 s74, s56, 2")
    e("  v_add_u32 v34, s74, v4")
    e("  s_lshl_b32 s74, s58, 6")
    e("  v_lshl_add_u32 v35, v3, 2, s74")
    srd(48, P_LRE, 2048)
    e("  buffer_load_dword v36, v35, s[48:51], 0 offen")
    srd(52, P_LIM, 2048)
    e("  buffer_load_dword v37, v35, s[52:55], 0 offen")
    srd(48, P_LDT, 2048)
    e("  buffer_load_dword v38, v35, s[48:51], 0 offen")
    e("  s_waitcnt vmcnt(0) lgkmcnt(0)")
    e("  s_barrier")
    e(f"  v_lshlrev_b32 v62, 4, v34")
    e(f"  v_mul_u32_u24 v62, {UST}, v62")
    e("  v_lshl_add_u32 v62, v3, 3, v62")
    def u_reads():
        for i in range(16):
            e(f"  ds_read_b64 v[{64+4*i}:{65+4*i}], v62 offset:{i*UST}")
            e(f"  ds_read_b64 v[{66+4*i}:{67+4*i}], v62 offset:{i*UST+128}")
    u_reads()
    for (src, dst) in ((36, 40), (37, 42), (38, 44)):
        e(f"  v_lshlrev_b32 v{dst}, 16, v{src}")
        e(f"  v_and_b32 v{dst+1}, 0xffff0000, v{src}")
    for c in range(2):
        e(f"  v_mul_f32 v{44+c}, 0x3fb8aa3b, v{44+c}")
        e(f"  v_exp_f32 v{44+c}, v{44+c}")
        e("  s_nop 0")
        bf16_round(44+c, 44+c, 32)
        e(f"  v_mul_f32 v46, v{44+c}, v{40+c}")
        e(f"  v_mul_f32 v47, v{44+c}, v{42+c}")
        e(f"  v_mul_f32 v46, 0x3fb8aa3b, v46")
        e(f"  v_exp_f32 v46, v46")
        e(f"  v_mul_f32 v47, 0.15915494, v47")
        e(f"  v_fract_f32 v47, v47")
        e(f"  v_cos_f32 v48, v47")
        e(f"  v_sin_f32 v49, v47")
        e("  s_nop 0")
        e(f"  v_mul_f32 v{50+c}, v46, v48")
        e(f"  v_mul_f32 v{52+c}, v46, v49")
        e(f"  v_mul_f32 v46, v{40+c}, v{40+c}")
        e(f"  v_fmac_f32 v46, v{42+c}, v{42+c}")
        e(f"  v_rcp_f32 v46, v46")
        e(f"  v_add_f32 v47, -1.0, v{50+c}")
        e(f"  v_mul_f32 v48, v47, v{40+c}")
        e(f"  v_fmac_f32 v48, v{52+c}, v{42+c}")
        e(f"  v_mul_f32 v49, v{52+c}, v{40+c}")
        e(f"  v_fma_f32 v49, -v47, v{42+c}, v49")
        e(f"  v_mul_f32 v{54+c}, v48, v46")
        e(f"  v_mul_f32 v{56+c}, v49, v46")
    for c in range(2):
        e(f"  v_xor_b32 v{58+c}, 0x80000000, v{52+c}")
        e(f"  v_xor_b32 v{60+c}, 0x80000000, v{56+c}")
    def cmul(dr, di, ar_, ai, br, bi, nbi, tr):
        e(f"  v_pk_mul_f32 v[{tr}:{tr+1}], v[{ar_}:{ar_+1}], v[{br}:{br+1}]")
        e(f"  v_pk_mul_f32 v[{tr+2}:{tr+3}], v[{ai}:{ai+1}], v[{br}:{br+1}]")
        e(f"  v_pk_fma_f32 v[{tr}:{tr+1}], v[{ai}:{ai+1}], v[{nbi}:{nbi+1}], v[{tr}:{tr+1}]")
        e(f"  v_pk_fma_f32 v[{tr+2}:{tr+3}], v[{ar_}:{ar_+1}], v[{bi}:{bi+1}], v[{tr+2}:{tr+3}]")
        e(f"  v_mov_b32 v{dr}, v{tr}\n  v_mov_b32 v{dr+1}, v{tr+1}\n  v_mov_b32 v{di}, v{tr+2}\n  v_mov_b32 v{di+1}, v{tr+3}")
    def cneg(d, s):
        e(f"  v_xor_b32 v{d}, 0x80000000, v{s}\n  v_xor_b32 v{d+1}, 0x80000000, v{s+1}")
    for k in range(2):
        e(f"  v_mov_b32 v{8+k}, v{50+k}\n  v_mov_b32 v{10+k}, v{52+k}")
    for it in range(4):
        cneg(12, 10); cmul(8, 10, 8, 10, 8, 10, 12, 20)
    cneg(12, 10)
    for k in range(2):
        e(f"  v_mov_b32 v{14+k}, v{8+k}\n  v_mov_b32 v{16+k}, v{10+k}")
    for it in range(4):
        cneg(18, 16); cmul(14, 16, 14, 16, 14, 16, 18, 20)
    cneg(18, 16)
    e("  s_waitcnt lgkmcnt(0)")
    for k in range(4): e(f"  v_mov_b32 v{24+k}, 0")
    def hstep(bur, bui):
        e(f"  v_pk_fma_f32 v[20:21], v[24:25], v[50:51], v[{bur}:{bur+1}]")
        e(f"  v_pk_fma_f32 v[22:23], v[26:27], v[50:51], v[{bui}:{bui+1}]")
        e(f"  v_pk_fma_f32 v[20:21], v[26:27], v[58:59], v[20:21]")
        e(f"  v_pk_fma_f32 v[26:27], v[24:25], v[52:53], v[22:23]")
        e(f"  v_mov_b32 v24, v20\n  v_mov_b32 v25, v21")
    for i in range(16):
        ur = 64+4*i; ui = 66+4*i
        e(f"  v_pk_mul_f32 v[28:29], v[{ur}:{ur+1}], v[54:55]")
        e(f"  v_pk_mul_f32 v[30:31], v[{ui}:{ui+1}], v[54:55]")
        e(f"  v_pk_fma_f32 v[28:29], v[{ui}:{ui+1}], v[60:61], v[28:29]")
        e(f"  v_pk_fma_f32 v[{ui}:{ui+1}], v[{ur}:{ur+1}], v[56:57], v[30:31]")
        e(f"  v_mov_b32 v{ur}, v28\n  v_mov_b32 v{ur+1}, v29")
        e(f"  ds_write_b64 v62, v[{ur}:{ur+1}] offset:{i*UST}")
        e(f"  ds_write_b64 v62, v[{ui}:{ui+1}] offset:{i*UST+128}")
        hstep(ur, ui)
    e("  v_lshlrev_b32 v39, 8, v34")
    e("  v_lshl_add_u32 v39, v3, 4, v39")
    e(f"  v_add_u32 v39, {EOFF}, v39")
    e(f"  ds_write_b128 v39, v[24:27]")
    e("  s_waitcnt lgkmcnt(0)")
    e("  s_barrier")
    e("  v_lshlrev_b32 v63, 4, v3")
    e(f"  v_add_u32 v63, {EOFF}, v63")
    def seg_reads():
        for i in range(16):
            e(f"  ds_read_b128 v[{64+4*i}:{67+4*i}], v63 offset:{i*256}")
        e("  s_waitcnt lgkmcnt(0)")
    seg_reads()
    def horner(init_zero):
        if init_zero:
            for k in range(4): e(f"  v_mov_b32 v{24+k}, 0")
        for i in range(16):
            if not init_zero:
                e(f"  v_cmp_eq_u32 vcc, {i}, v34")
                e("  s_nop 1")
                for k in range(4): e(f"  v_cndmask_b32 v{28+k}, v{28+k}, v{24+k}, vcc")
            er = 64+4*i
            e(f"  v_pk_fma_f32 v[20:21], v[24:25], v[8:9], v[{er}:{er+1}]")
            e(f"  v_pk_fma_f32 v[22:23], v[26:27], v[8:9], v[{er+2}:{er+3}]")
            e(f"  v_pk_fma_f32 v[20:21], v[26:27], v[12:13], v[20:21]")
            e(f"  v_pk_fma_f32 v[26:27], v[24:25], v[10:11], v[22:23]")
            e(f"  v_mov_b32 v24, v20\n  v_mov_b32 v25, v21")
    horner(True)
    srd(40, P_WS, SZ_AGG, WS_AGG)
    srd(44, P_DBG, 256)
    e("  s_lshl_b32 s74, s58, 8")
    e("  v_lshl_add_u32 v39, v3, 4, s74")
    e("  s_lshl_b32 s75, s57, 13")
    e("  s_lshl_b32 s76, s58, 2")
    Lnp = Lbl.new("K1_nopub")
    e("  s_cmp_lg_u32 s56, 0")
    e(f"  s_cbranch_scc1 {Lnp}")
    e("  s_mov_b64 s[82:83], exec")
    e("  s_mov_b64 exec, 0xffff")
    e("  buffer_store_dwordx4 v[24:27], v39, s[40:43], s75 offen sc1")
    e("  s_waitcnt vmcnt(0)")
    e("  s_mov_b64 exec, 1")
    e("  s_lshl_b32 s77, 1, s57")
    e("  v_mov_b32 v20, s77")
    e("  v_mov_b32 v21, 0")
    e("  buffer_atomic_or v20, v21, s[44:47], s76 offen sc1")
    e("  s_mov_b64 exec, s[82:83]")
    e(f"{Lnp}:")
    stamp(3)

    T = 64
    srd(48, P_WS, SZ_HMID, WS_HMID)
    e("  s_lshl_b32 s74, s57, 1")
    e("  s_lshr_b32 s77, s56, 1")
    e("  s_add_u32 s74, s74, s77")
    e(f"  s_mul_i32 s74, s74, {56*16384}")
    e("  s_and_b32 s77, s56, 1")
    e("  s_lshl_b32 s77, s77, 13")
    e("  s_add_u32 s74, s74, s77")
    e(f"  v_lshlrev_b32 v{T}, 7, v3")
    e(f"  v_lshl_add_u32 v{T}, v4, 3, v{T}")
    e(f"  v_add_u32 v98, s74, v{T}")
    e("  s_mul_i32 s77, s58, 112")
    for nt in range(7):
        e(f"  s_add_u32 s78, s77, {nt*16}")
        e(f"  s_lshr_b32 s79, s78, 6")
        e(f"  s_lshl_b32 s79, s79, 14")
        e(f"  s_and_b32 s78, s78, 63")
        e(f"  s_lshl_b32 s78, s78, 1")
        e(f"  s_add_u32 s{62+nt}, s79, s78")
    e("  s_mov_b32 s74, 0xbfb8aa3b")
    def unpk(dst, srcs):
        for i, (src, hi) in enumerate(srcs):
            if hi: e(f"  v_and_b32 v{dst+i}, 0xffff0000, v{src}")
            else:  e(f"  v_lshlrev_b32 v{dst+i}, 16, v{src}")
    for mt in range(4):
        if mt: e(f"  v_add_u32 v98, {16*128}, v98")
        for nt in range(7):
            g = GACC + (nt*4+mt)*4; u = UACC + (nt*4+mt)*4
            e(f"  v_cvt_pk_bf16_f32 v{T}, v{g}, v{g+1}")
            e(f"  v_cvt_pk_bf16_f32 v{T+1}, v{g+2}, v{g+3}")
            unpk(T+2, ((T,0),(T,1),(T+1,0),(T+1,1)))
            for i in range(4): e(f"  v_mul_f32 v{T+6+i}, s74, v{T+2+i}")
            for i in range(4): e(f"  v_exp_f32 v{T+6+i}, v{T+6+i}")
            for i in range(4): e(f"  v_accvgpr_read_b32 v{T+14+i}, a{u+i}")
            for i in range(4): e(f"  v_add_f32 v{T+6+i}, 1.0, v{T+6+i}")
            for i in range(4): e(f"  v_rcp_f32 v{T+6+i}, v{T+6+i}")
            e(f"  v_cvt_pk_bf16_f32 v{T+12}, v{T+14}, v{T+15}")
            e(f"  v_cvt_pk_bf16_f32 v{T+13}, v{T+16}, v{T+17}")
            e(f"  v_pk_mul_f32 v[{T+6}:{T+7}], v[{T+2}:{T+3}], v[{T+6}:{T+7}]")
            e(f"  v_pk_mul_f32 v[{T+8}:{T+9}], v[{T+4}:{T+5}], v[{T+8}:{T+9}]")
            e(f"  v_cvt_pk_bf16_f32 v{T+10}, v{T+6}, v{T+7}")
            e(f"  v_cvt_pk_bf16_f32 v{T+11}, v{T+8}, v{T+9}")
            unpk(T+2, ((T+10,0),(T+10,1),(T+11,0),(T+11,1)))
            unpk(T+6, ((T+12,0),(T+12,1),(T+13,0),(T+13,1)))
            e(f"  v_pk_mul_f32 v[{T+2}:{T+3}], v[{T+2}:{T+3}], v[{T+6}:{T+7}]")
            e(f"  v_pk_mul_f32 v[{T+4}:{T+5}], v[{T+4}:{T+5}], v[{T+8}:{T+9}]")
            t = 90 + ((mt*7+nt) % 4)*2
            e(f"  v_cvt_pk_bf16_f32 v{t}, v{T+2}, v{T+3}")
            e(f"  v_cvt_pk_bf16_f32 v{t+1}, v{T+4}, v{T+5}")
            e(f"  buffer_store_dwordx2 {vr(t,2)}, v98, s[48:51], s{62+nt} offen")
    stamp(4)

    for k in range(4): e(f"  v_mov_b32 v{24+k}, 0")
    Lnw = Lbl.new("K1_nowait"); Lpoll = Lbl.new("K1_poll"); Lgot = Lbl.new("K1_got")
    e("  s_cmp_eq_u32 s57, 0")
    e(f"  s_cbranch_scc1 {Lnw}")
    e("  s_lshl_b32 s77, 1, s57")
    e("  s_sub_u32 s77, s77, 1")
    e("  s_mov_b32 s78, 0")
    e("  v_mov_b32 v21, 0")
    e(f"{Lpoll}:")
    e("  buffer_load_dword v20, v21, s[44:47], s76 offen sc1")
    e("  s_waitcnt vmcnt(0)")
    e("  v_readfirstlane_b32 s79, v20")
    e("  s_add_u32 s78, s78, 1")
    e("  s_and_b32 s79, s79, s77")
    e("  s_cmp_eq_u32 s79, s77")
    e(f"  s_cbranch_scc1 {Lgot}")
    e("  s_cmp_gt_u32 s78, 0x100000")
    e(f"  s_cbranch_scc1 {Lgot}")
    e("  s_sleep 2")
    e(f"  s_branch {Lpoll}")
    e(f"{Lgot}:")
    for i in range(7):
        e(f"  s_mov_b32 s77, {i*8192}")
        e(f"  buffer_load_dwordx4 v[{64+4*i}:{67+4*i}], v39, s[40:43], s77 offen sc1")
    e("  s_waitcnt vmcnt(0)")
    for i in range(7):
        if i:
            e(f"  s_cmp_le_u32 s57, {i}")
            e(f"  s_cbranch_scc1 {Lnw}")
        er = 64+4*i
        e(f"  v_pk_fma_f32 v[20:21], v[24:25], v[14:15], v[{er}:{er+1}]")
        e(f"  v_pk_fma_f32 v[22:23], v[26:27], v[14:15], v[{er+2}:{er+3}]")
        e(f"  v_pk_fma_f32 v[20:21], v[26:27], v[18:19], v[20:21]")
        e(f"  v_pk_fma_f32 v[26:27], v[24:25], v[16:17], v[22:23]")
        e(f"  v_mov_b32 v24, v20\n  v_mov_b32 v25, v21")
    e(f"{Lnw}:")
    stamp(5)
    seg_reads()
    horner(False)
    u_reads()
    for k in range(4): e(f"  v_mov_b32 v{24+k}, v{28+k}")
    srd(48, P_WS, SZ_H, WS_HHI)
    srd(52, P_WS, SZ_H, WS_HLO)
    e("  s_lshl_b32 s74, s57, 20")
    e("  s_lshr_b32 s77, s58, 1")
    e("  s_lshl_b32 s77, s77, 14")
    e("  s_add_u32 s74, s74, s77")
    e("  s_and_b32 s77, s58, 1")
    e("  s_lshl_b32 s77, s77, 6")
    e("  s_add_u32 s74, s74, s77")
    e("  v_lshrrev_b32 v39, 3, v34")
    e("  v_lshlrev_b32 v39, 19, v39")
    e("  v_and_b32 v28, 7, v34")
    e("  v_lshl_add_u32 v39, v28, 11, v39")
    e("  v_lshl_add_u32 v39, v3, 2, v39")
    e("  v_add_u32 v39, s74, v39")
    e("  s_waitcnt lgkmcnt(0)")
    for i in range(16):
        hstep(64+4*i, 66+4*i)
        o = 240 + (i % 4)*4
        e(f"  v_cvt_pk_bf16_f32 v{o}, v24, v25")
        e(f"  v_cvt_pk_bf16_f32 v{o+2}, -v26, -v27")
        e(f"  v_lshlrev_b32 v28, 16, v{o}")
        e(f"  v_and_b32 v29, 0xffff0000, v{o}")
        e(f"  v_lshlrev_b32 v30, 16, v{o+2}")
        e(f"  v_and_b32 v31, 0xffff0000, v{o+2}")
        e(f"  v_sub_f32 v28, v24, v28")
        e(f"  v_sub_f32 v29, v25, v29")
        e(f"  v_sub_f32_e64 v30, -v26, v30")
        e(f"  v_sub_f32_e64 v31, -v27, v31")
        e(f"  v_cvt_pk_bf16_f32 v{o+1}, v28, v29")
        e(f"  v_cvt_pk_bf16_f32 v{o+3}, v30, v31")
        e(f"  s_mov_b32 s74, 262144")
        e(f"  buffer_store_dword v{o}, v39, s[48:51], 0 offen offset:{i*128}")
        e(f"  buffer_store_dword v{o+2}, v39, s[48:51], s74 offen offset:{i*128}")
        e(f"  buffer_store_dword v{o+1}, v39, s[52:55], 0 offen offset:{i*128}")
        e(f"  buffer_store_dword v{o+3}, v39, s[52:55], s74 offen offset:{i*128}")
    if PROF: e("  s_waitcnt vmcnt(0)")
    stamp(6)
    stamp_flush(0, 7)
    e(f"{Lend}:")
    e("  s_endpgm")

def kernel2():
    K = "gm_phase2_kernel"
    STAMP["t"] = 6; STAMP["regs"] = [8,9,10,11,12,13,18,19]
    e(f".globl {K}\n.p2align 8\n.type {K},@function\n{K}:")
    Lend = "K2_end"; LB = "K2_typeB"
    e("  s_cmp_ge_u32 s2, 256")
    e(f"  s_cbranch_scc1 {Lend}")
    load_ptrs()
    e("  v_and_b32 v1, 63, v0")
    e("  v_lshrrev_b32 v2, 6, v0")
    e("  s_nop 0")
    e("  v_readfirstlane_b32 s56, v2")
    e("  v_and_b32 v3, 15, v1")
    e("  v_lshrrev_b32 v4, 4, v1")
    e("  s_and_b32 s61, s2, 3")
    e("  s_lshr_b32 s62, s2, 3")
    e("  s_lshl_b32 s57, s61, 2")
    e("  s_lshr_b32 s63, s62, 3")
    e("  s_add_u32 s57, s57, s63")
    e("  s_and_b32 s58, s62, 7")
    e("  s_lshl_b32 s60, s57, 3")
    e("  s_add_u32 s60, s60, s58")
    e("  s_lshr_b32 s87, s56, 1")
    e("  s_and_b32 s88, s56, 1")
    e("  s_lshl_b32 s70, s56, 12")
    e("  s_waitcnt lgkmcnt(0)")
    stamp(0)
    V_RA0, V_RA1 = 20, 21
    e("  v_and_b32 v32, 7, v1")
    e("  v_xor_b32 v32, v32, v4")
    e("  v_lshlrev_b32 v32, 4, v32")
    e("  v_lshl_add_u32 v32, v3, 7, v32")
    e("  s_lshl_b32 s74, s87, 13")
    e(f"  v_add_u32 v{V_RA0}, s74, v32")
    e(f"  v_xor_b32 v{V_RA1}, 64, v{V_RA0}")
    e("  v_mov_b32 v31, v32")
    ACC = 64; FR = 128
    for i in range(64): e(f"  v_mov_b32 v{ACC+i}, 0")
    e("  s_mov_b32 s62, 0\n  s_mov_b32 s63, 0\n  s_mov_b32 s64, 0\n  s_mov_b32 s65, 0\n  s_mov_b32 s71, 0")
    def flat(fl):
        for f in fl:
            if isinstance(f, str): e("  " + f)
            else:
                for x in f: e("  " + x)
    def flat_dma(fl):
        for f in fl:
            if isinstance(f, str):
                e("  " + f)
            else:
                for x in f: e("  " + x)
    e("  s_bitcmp1_b32 s2, 2")
    e(f"  s_cbranch_scc1 {LB}")

    NB = int(os.environ.get("NBA", "4")); ST = 32768; D = 8; NST = 56
    V_DA = 8; V_DW = 12; V_RW = 24
    srd(40, P_WS, SZ_HMID, WS_HMID)
    srd(44, P_W2, 3584*2048)
    e(f"  s_mul_i32 s73, s57, {56*16384}")
    e("  s_lshl_b32 s75, s58, 8")
    for j in range(4):
        e(f"  s_lshl_b32 s74, s56, 8")
        e(f"  s_add_u32 s74, s74, {j*64}")
        e(f"  v_add_u32 v32, s74, v1")
        e(f"  v_lshrrev_b32 v33, 3, v32")
        e(f"  v_and_b32 v34, 7, v32")
        e(f"  v_and_b32 v35, 7, v33")
        e(f"  v_xor_b32 v34, v34, v35")
        e(f"  v_lshlrev_b32 v35, 7, v33")
        e(f"  v_lshl_add_u32 v35, v34, 4, v35")
        e(f"  v_add_u32 v{V_DA+j}, s73, v35")
        e(f"  v_lshrrev_b32 v33, 4, v32")
        e(f"  v_bfe_u32 v34, v32, 1, 3")
        e(f"  v_and_b32 v35, 7, v33")
        e(f"  v_xor_b32 v34, v34, v35")
        e(f"  v_lshlrev_b32 v34, 5, v34")
        e(f"  v_and_b32 v35, 1, v32")
        e(f"  v_lshl_add_u32 v34, v35, 4, v34")
        e(f"  v_and_b32 v35, 0x33, v33")
        e(f"  v_bfe_u32 v36, v33, 2, 1")
        e(f"  v_lshl_or_b32 v35, v36, 3, v35")
        e(f"  v_bfe_u32 v36, v33, 3, 1")
        e(f"  v_lshl_or_b32 v35, v36, 2, v35")
        e(f"  v_lshl_add_u32 v35, v35, 11, v34")
        e(f"  v_add_u32 v{V_DW+j}, s75, v35")
    e("  v_bfe_u32 v32, v1, 5, 1")
    e("  v_lshlrev_b32 v32, 4, v32")
    e("  v_bfe_u32 v33, v1, 4, 1")
    e("  v_lshlrev_b32 v33, 2, v33")
    e("  v_bfe_u32 v34, v1, 2, 2")
    e("  v_add_u32 v33, v33, v34")
    e("  v_add_u32 v32, v32, v33")
    e("  v_lshlrev_b32 v32, 8, v32")
    e("  v_and_b32 v34, 3, v1")
    e("  v_lshl_add_u32 v32, v34, 3, v32")
    e("  v_add_u32 v32, 16384, v32")
    e("  s_lshl_b32 s74, s88, 2")
    for j in range(4):
        e(f"  s_add_u32 s75, s74, {j}")
        e(f"  v_xor_b32 v34, s75, v33")
        e(f"  v_lshl_add_u32 v{V_RW+j}, v34, 5, v32")
    V_PA, V_PB, V_DUM = 28, 29, 30
    PFA = int(os.environ.get("PFA", "0"))
    e("  s_and_b32 s77, s56, 1")
    e("  s_and_b32 s78, s58, 3")
    e("  s_lshl_b32 s78, s78, 5")
    e("  s_lshl_b32 s74, s77, 4")
    e("  s_add_u32 s78, s78, s74")
    e("  v_add_u32 v32, s78, v3")
    e("  v_mul_u32_u24 v33, 7168, v32")
    e("  v_add_u32 v33, s73, v33")
    e("  s_and_b32 s78, s57, 3")
    e("  s_lshl_b32 s78, s78, 4")
    e("  s_lshl_b32 s74, s77, 3")
    e("  s_add_u32 s78, s78, s74")
    e("  v_lshrrev_b32 v34, 1, v3")
    e("  v_add_u32 v34, s78, v34")
    e("  v_lshlrev_b32 v34, 11, v34")
    e("  v_and_b32 v35, 1, v3")
    e("  v_lshl_add_u32 v34, v35, 7, v34")
    e("  s_lshl_b32 s75, s58, 8")
    e("  v_add_u32 v34, s75, v34")
    e("  s_cmp_lt_u32 s56, 2")
    e("  s_cselect_b32 s96, s40, s44")
    e("  s_cselect_b32 s97, s41, s45")
    e("  s_cselect_b32 s98, s42, s46")
    e("  s_mov_b32 s99, 0x00020000")
    e(f"  s_mov_b32 s90, {64*2048}")
    e(f"  s_cselect_b32 s90, 128, s90")
    e("  s_cselect_b64 vcc, -1, 0")
    e(f"  v_cndmask_b32 v{V_PA}, v34, v33, vcc")
    e(f"  s_mul_i32 s89, s90, {NB}")
    def pfA():
        if not PFA: return []
        return [f"buffer_load_dword v{V_DUM}, v{V_PA}, s[96:99], s89 offen", "s_add_u32 s89, s89, s90"]
    def dmaA0():
        f = []
        for j in range(4):
            f.append([f"s_add_u32 s79, s62, s70", f"s_add_u32 m0, s79, {j*1024}"] if j == 0 else [f"s_add_u32 m0, s79, {j*1024}"])
            f.append(f"buffer_load_dwordx4 v{V_DA+j}, s[40:43], s63 offen lds")
        return f
    def dmaA():
        f = []
        for j in range(4):
            f.append(f"s_add_u32 m0, s79, {16384+j*1024}")
            f.append(f"buffer_load_dwordx4 v{V_DW+j}, s[44:47], s64 offen lds")
        f.append(["s_add_u32 s63, s63, 16384", f"s_add_u32 s64, s64, {64*2048}", "s_add_u32 s65, s65, 1"])
        f.append([f"s_add_u32 s62, s62, {ST}", f"s_cmp_ge_u32 s62, {NB*ST}", "s_cselect_b32 s62, 0, s62"])
        f.append([f"s_cmp_ge_u32 s65, {NST}", "s_cselect_b32 s42, 0, s42", "s_cselect_b32 s46, 0, s46"])
        return f
    def a_reads(st, u):
        va = V_RA1 if u else V_RA0
        b = FR + st*32
        r = [f"ds_read_b128 {vr(b+mt*4)}, v{va} offset:{mt*2048}" for mt in range(4)]
        for j in range(4):
            r.append(f"ds_read_b64_tr_b16 {vr(b+16+j*4,2)}, v{V_RW+j} offset:{u*8192}")
            r.append(f"ds_read_b64_tr_b16 {vr(b+18+j*4,2)}, v{V_RW+j} offset:{u*8192+2048}")
        return r
    def a_mfmas(st):
        b = FR + st*32
        return [f"v_mfma_f32_16x16x32_bf16 {vr(ACC+(j*4+mt)*4)}, {vr(b+16+j*4)}, {vr(b+mt*4)}, {vr(ACC+(j*4+mt)*4)}"
                for j in range(4) for mt in range(4)]
    def advA():
        return [["s_add_u32 s71, s71, 1", f"s_cmp_ge_u32 s71, {NB}", f"s_mov_b32 s72, {ST}", f"s_cselect_b32 s72, {-(NB-1)*ST & 0xffffffff}, s72", "s_cselect_b32 s71, 0, s71"]] + \
               [f"v_add_u32 v{x}, s72, v{x}" for x in (V_RA0, V_RA1, V_RW, V_RW+1, V_RW+2, V_RW+3)]
    for s in range(NB-1): flat(dmaA0() + dmaA())
    flat(dmaA0())
    for s in range(PFA): flat(pfA())
    srd(48, P_WS, SZ_G, WS_G)
    e("  s_lshl_b32 s74, s57, 7")
    e("  s_lshl_b32 s75, s87, 6")
    e("  s_add_u32 s74, s74, s75")
    e("  v_add_u32 v32, s74, v3")
    e("  v_lshlrev_b32 v33, 2, v32")
    for mt in range(4):
        e(f"  buffer_load_dword v{40+mt}, v33, s[48:51], 0 offen offset:{mt*64}")
    srd(52, P_WS, SZ_T, WS_T)
    e("  s_lshl_b32 s74, s58, 8")
    e("  s_lshl_b32 s75, s88, 7")
    e("  s_add_u32 s74, s74, s75")
    e("  v_lshlrev_b32 v34, 11, v32")
    e("  v_lshl_add_u32 v34, v4, 3, v34")
    e("  v_add_u32 v34, s74, v34")
    e(f"  s_waitcnt vmcnt({(NB-2)*D + D//2 + 4 + PFA})")
    e("  s_barrier")
    stamp(1)
    flat(a_reads(0, 0))
    e("  s_mov_b32 s84, 0")
    Ll = Lbl.new("K2_A")
    e(f"{Ll}:")
    e("  s_waitcnt lgkmcnt(0)")
    interleave(a_mfmas(0), mix(a_reads(1, 1), dmaA() + pfA()), 0.95)
    e(f"  s_waitcnt vmcnt({(NB-2)*(D + (1 if PFA else 0)) + (1 if PFA else 0)}) lgkmcnt(0)")
    e("  s_barrier")
    interleave(a_mfmas(1), advA() + mix(a_reads(0, 0), dmaA0()), 0.95)
    e("  s_add_u32 s84, s84, 1")
    e(f"  s_cmp_lt_u32 s84, {NST}")
    e(f"  s_cbranch_scc1 {Ll}")
    stamp(2)
    for mt in range(4):
        e(f"  v_sub_f32 v{40+mt}, 1.0, v{40+mt}")
        bf16_round(40+mt, 40+mt, 44)
    for mt in range(4):
        if mt: e(f"  v_add_u32 v34, {16*2048}, v34")
        for j in range(4):
            a = ACC + (j*4+mt)*4
            e(f"  v_cvt_pk_bf16_f32 v44, v{a}, v{a+1}")
            e(f"  v_cvt_pk_bf16_f32 v45, v{a+2}, v{a+3}")
            for i, (src, hi) in enumerate(((44,0),(44,1),(45,0),(45,1))):
                if hi: e(f"  v_and_b32 v{46+i}, 0xffff0000, v{src}")
                else:  e(f"  v_lshlrev_b32 v{46+i}, 16, v{src}")
            for i in range(4): e(f"  v_mul_f32 v{46+i}, v{46+i}, v{40+mt}")
            t = 50 + (j % 4)*2
            e(f"  v_cvt_pk_bf16_f32 v{t}, v46, v47")
            e(f"  v_cvt_pk_bf16_f32 v{t+1}, v48, v49")
            e(f"  buffer_store_dwordx2 {vr(t,2)}, v34, s[52:55], 0 offen offset:{j*32} sc0 sc1")
    e("  s_waitcnt vmcnt(0)")
    stamp(3)
    stamp_flush(1, 4)
    e("  s_barrier")
    e("  s_cmp_lg_u32 s56, 0")
    e(f"  s_cbranch_scc1 {Lend}")
    srd(48, P_DBG, 256)
    e("  s_lshr_b32 s74, s60, 1")
    e("  s_lshl_b32 s74, s74, 2")
    e("  s_and_b32 s75, s60, 1")
    e("  s_lshl_b32 s75, 1, s75")
    e("  s_mov_b64 exec, 1")
    e("  v_mov_b32 v20, s75")
    e("  v_mov_b32 v21, 0")
    e("  buffer_atomic_or v20, v21, s[48:51], s74 offen sc1")
    e(f"  s_branch {Lend}")

    e(f"{LB}:")
    NB = 3; ST = 49152; D = 12; NST = 32
    V_DA = 8; V_DW = 12; V_RW0, V_RW1 = 24, 25
    srd(40, P_WS, SZ_H, WS_HHI)
    srd(48, P_WS, SZ_H, WS_HLO)
    srd(44, P_CRE, 1024*2048)
    e("  s_lshl_b32 s73, s57, 19")
    e("  s_lshl_b32 s75, s58, 18")
    for j in range(4):
        e(f"  s_lshl_b32 s74, s56, 8")
        e(f"  s_add_u32 s74, s74, {j*64}")
        e(f"  v_add_u32 v32, s74, v1")
        e(f"  v_lshrrev_b32 v33, 3, v32")
        e(f"  v_and_b32 v34, 7, v32")
        e(f"  v_and_b32 v35, 7, v33")
        e(f"  v_xor_b32 v34, v34, v35")
        e(f"  v_lshlrev_b32 v34, 4, v34")
        e(f"  v_lshl_add_u32 v35, v33, 7, v34")
        e(f"  v_add_u32 v{V_DA+j}, s73, v35")
        e(f"  v_lshl_add_u32 v35, v33, 11, v34")
        e(f"  v_add_u32 v{V_DW+j}, s75, v35")
    e("  s_lshl_b32 s74, s88, 13")
    e("  s_add_u32 s74, s74, 32768")
    e(f"  v_add_u32 v{V_RW0}, s74, v31")
    e(f"  v_xor_b32 v{V_RW1}, 64, v{V_RW0}")
    V_PA, V_PB, V_DUM = 28, 29, 30
    e("  s_and_b32 s77, s56, 1")
    e("  s_lshl_b32 s77, s77, 6")
    e("  v_add_u32 v32, s77, v1")
    e("  v_lshlrev_b32 v33, 12, v32")
    e(f"  v_add_u32 v{V_PA}, s73, v33")
    e("  v_lshlrev_b32 v33, 11, v32")
    e(f"  v_add_u32 v{V_PB}, s75, v33")
    e("  s_cmp_lt_u32 s56, 2")
    e("  s_cselect_b32 s96, s40, s48")
    e("  s_cselect_b32 s97, s41, s49")
    e("  s_mov_b32 s98, s42")
    e("  s_mov_b32 s99, 0x00020000")
    srd(92, P_CRE, 1024*2048)
    PFB = 0
    e(f"  s_mov_b32 s89, {NB*128}")
    e(f"  s_mov_b32 s90, {NB*128}")
    e(f"  s_mov_b32 s91, {NB}")
    def pfB():
        return [f"buffer_load_dword v{V_DUM}, v{V_PA}, s[96:99], s89 offen",
                f"buffer_load_dword v{V_DUM}, v{V_PB}, s[92:95], s90 offen",
                ["s_add_u32 s89, s89, 128", "s_add_u32 s90, s90, 128", "s_add_u32 s91, s91, 1"],
                ["s_cmp_eq_u32 s91, 16", f"s_cselect_b32 s92, s{P_CIM}, s92", f"s_cselect_b32 s93, s{P_CIM+1}, s93", "s_cselect_b32 s90, 0, s90"]]
    def EARLY_B():
        srd(52, P_WS, SZ_G, WS_G)
        e("  s_lshl_b32 s74, s57, 7")
        e("  s_lshl_b32 s77, s87, 6")
        e("  s_add_u32 s74, s74, s77")
        e("  v_add_u32 v32, s74, v3")
        e("  v_lshlrev_b32 v33, 2, v32")
        for mt in range(4):
            e(f"  buffer_load_dword v{40+mt}, v33, s[52:55], 0 offen offset:{mt*64}")
        srd(52, P_DSK, 2048)
        e("  s_lshl_b32 s74, s58, 8")
        e("  s_lshl_b32 s77, s88, 7")
        e("  s_add_u32 s74, s74, s77")
        e("  v_lshl_add_u32 v35, v4, 3, s74")
        for j in range(4):
            e(f"  buffer_load_dwordx2 v[{44+2*j}:{45+2*j}], v35, s[52:55], 0 offen offset:{j*32}")
        e("  v_lshl_add_u32 v36, v32, 11, v35")
        srd(52, P_X, 2048*2048)
        for mt in range(4):
            for j in range(4):
                r = 224 + (mt*4+j)*2
                e(f"  s_mov_b32 s74, {mt*16*2048}")
                e(f"  buffer_load_dwordx2 v[{r}:{r+1}], v36, s[52:55], s74 offen offset:{j*32}")
    def dmaB0():
        f = []
        for j in range(4):
            f.append([f"s_add_u32 s79, s62, s70", f"s_add_u32 m0, s79, {j*1024}"] if j == 0 else [f"s_add_u32 m0, s79, {j*1024}"])
            f.append(f"buffer_load_dwordx4 v{V_DA+j}, s[40:43], s63 offen lds")
        for j in range(2):
            f.append(f"s_add_u32 m0, s79, {16384+j*1024}")
            f.append(f"buffer_load_dwordx4 v{V_DA+j}, s[48:51], s63 offen lds")
        return f
    def dmaB():
        f = []
        for j in range(2, 4):
            f.append(f"s_add_u32 m0, s79, {16384+j*1024}")
            f.append(f"buffer_load_dwordx4 v{V_DA+j}, s[48:51], s63 offen lds")
        for j in range(4):
            f.append(f"s_add_u32 m0, s79, {32768+j*1024}")
            f.append(f"buffer_load_dwordx4 v{V_DW+j}, s[44:47], s64 offen lds")
        f.append(["s_add_u32 s63, s63, 16384", "s_add_u32 s64, s64, 128", "s_add_u32 s65, s65, 1"])
        f.append([f"s_add_u32 s62, s62, {ST}", f"s_cmp_ge_u32 s62, {NB*ST}", "s_cselect_b32 s62, 0, s62"])
        f.append(["s_cmp_eq_u32 s65, 16", f"s_cselect_b32 s44, s{P_CIM}, s44", f"s_cselect_b32 s45, s{P_CIM+1}, s45", "s_cselect_b32 s64, 0, s64"])
        f.append([f"s_cmp_ge_u32 s65, {NST}", "s_cselect_b32 s42, 0, s42", "s_cselect_b32 s46, 0, s46", "s_cselect_b32 s50, 0, s50"])
        return f
    def b_reads(st, u):
        va = V_RA1 if u else V_RA0; vw = V_RW1 if u else V_RW0
        b = FR + st*48
        r = [f"ds_read_b128 {vr(b+32+j*4)}, v{vw} offset:{j*2048}" for j in range(4)]
        r += [f"ds_read_b128 {vr(b+mt*4)}, v{va} offset:{mt*2048}" for mt in range(4)]
        r += [f"ds_read_b128 {vr(b+16+mt*4)}, v{va} offset:{16384+mt*2048}" for mt in range(4)]
        return r
    def b_mfmas(st):
        b = FR + st*48
        m = []
        for hl in range(2):
            for j in range(4):
                for mt in range(4):
                    acc = vr(ACC+(j*4+mt)*4)
                    m.append(f"v_mfma_f32_16x16x32_bf16 {acc}, {vr(b+32+j*4)}, {vr(b+hl*16+mt*4)}, {acc}")
        return m
    def advB():
        return [["s_add_u32 s71, s71, 1", f"s_cmp_ge_u32 s71, {NB}", f"s_mov_b32 s72, {ST}", f"s_cselect_b32 s72, {-(NB-1)*ST & 0xffffffff}, s72", "s_cselect_b32 s71, 0, s71"]] + \
               [f"v_add_u32 v{x}, s72, v{x}" for x in (V_RA0, V_RA1, V_RW0, V_RW1)]
    for s in range(NB-1): flat(dmaB0() + dmaB())
    flat(dmaB0())
    EARLY_B()
    e(f"  s_waitcnt vmcnt({(NB-2)*D + D//2 + 24})")
    e("  s_barrier")
    stamp(1)
    flat(b_reads(0, 0))
    e("  s_mov_b32 s84, 0")
    Ll = Lbl.new("K2_B")
    e(f"{Ll}:")
    e("  s_waitcnt lgkmcnt(0)")
    interleave(b_mfmas(0), mix(b_reads(1, 1), dmaB()), 0.9)
    e(f"  s_waitcnt vmcnt({(NB-2)*D}) lgkmcnt(0)")
    e("  s_barrier")
    interleave(b_mfmas(1), advB() + mix(b_reads(0, 0), dmaB0()), 0.9)
    e("  s_add_u32 s84, s84, 1")
    e(f"  s_cmp_lt_u32 s84, {NST}")
    e(f"  s_cbranch_scc1 {Ll}")
    stamp(2)
    for j in range(4):
        for i in range(4):
            src = 44+2*j+(i >> 1)
            if i & 1: e(f"  v_and_b32 v{192+j*4+i}, 0xffff0000, v{src}")
            else:     e(f"  v_lshlrev_b32 v{192+j*4+i}, 16, v{src}")
    for mt in range(4):
        for j in range(4):
            a = ACC + (j*4+mt)*4; xr = 224 + (mt*4+j)*2
            for i in range(4):
                src = xr + (i >> 1)
                if i & 1: e(f"  v_and_b32 v{52+i}, 0xffff0000, v{src}")
                else:     e(f"  v_lshlrev_b32 v{52+i}, 16, v{src}")
            e(f"  v_pk_mul_f32 v[52:53], v[52:53], v[{192+j*4}:{193+j*4}]")
            e(f"  v_pk_mul_f32 v[54:55], v[54:55], v[{194+j*4}:{195+j*4}]")
            e(f"  v_cvt_pk_bf16_f32 v56, v52, v53")
            e(f"  v_cvt_pk_bf16_f32 v57, v54, v55")
            for i, (src, hi) in enumerate(((56,0),(56,1),(57,0),(57,1))):
                if hi: e(f"  v_and_b32 v{52+i}, 0xffff0000, v{src}")
                else:  e(f"  v_lshlrev_b32 v{52+i}, 16, v{src}")
            for i in range(4): e(f"  v_fma_f32 v{a+i}, 2.0, v{a+i}, v{52+i}")
            for i in range(4): e(f"  v_mul_f32 v{a+i}, v{a+i}, v{40+mt}")
    srd(48, P_DBG, 256)
    srd(52, P_WS, SZ_T, WS_T)
    e("  s_lshr_b32 s74, s60, 1")
    e("  s_lshl_b32 s74, s74, 2")
    e("  s_and_b32 s75, s60, 1")
    e("  s_lshl_b32 s75, 1, s75")
    e("  s_mov_b32 s78, 0")
    e("  v_mov_b32 v37, 0")
    Lp = Lbl.new("K2_poll"); Lg = Lbl.new("K2_got")
    e(f"{Lp}:")
    e("  buffer_load_dword v38, v37, s[48:51], s74 offen sc1")
    e("  s_waitcnt vmcnt(0)")
    e("  v_readfirstlane_b32 s79, v38")
    e("  s_add_u32 s78, s78, 1")
    e("  s_and_b32 s79, s79, s75")
    e(f"  s_cbranch_scc1 {Lg}")
    e("  s_cmp_gt_u32 s78, 0x100000")
    e(f"  s_cbranch_scc1 {Lg}")
    e("  s_sleep 1")
    e(f"  s_branch {Lp}")
    e(f"{Lg}:")
    stamp(3)
    for mt in range(4):
        for j in range(4):
            r = 160 + (mt*4+j)*2
            e(f"  s_mov_b32 s74, {mt*16*2048}")
            e(f"  buffer_load_dwordx2 v[{r}:{r+1}], v36, s[52:55], s74 offen offset:{j*32} sc0 sc1")
    srd(48, P_OUT, 2048*1024*4)
    e("  v_lshlrev_b32 v36, 1, v36")
    for mt in range(4):
        for j in range(4):
            a = ACC + (j*4+mt)*4; tr = 160 + (mt*4+j)*2
            e(f"  s_waitcnt vmcnt({15 - (mt*4+j) + (mt*4+j)})") if False else None
            e(f"  s_waitcnt vmcnt({15})") if (mt*4+j) == 0 else None
            for i in range(4):
                src = tr + (i >> 1)
                if i & 1: e(f"  v_and_b32 v{56+i}, 0xffff0000, v{src}")
                else:     e(f"  v_lshlrev_b32 v{56+i}, 16, v{src}")
            e(f"  v_pk_add_f32 v[{a}:{a+1}], v[{a}:{a+1}], v[56:57]")
            e(f"  v_pk_add_f32 v[{a+2}:{a+3}], v[{a+2}:{a+3}], v[58:59]")
            e(f"  s_mov_b32 s74, {mt*16*4096}")
            e(f"  buffer_store_dwordx4 {vr(a)}, v36, s[48:51], s74 offen offset:{j*64}")
            if (mt*4+j) < 15: e(f"  s_waitcnt vmcnt(15)")
    if PROF: e("  s_waitcnt vmcnt(0)")
    stamp(4)
    stamp_flush(1, 5)
    e(f"{Lend}:")
    e("  s_endpgm")

def desc(name, vgpr, accum):
    e(f".amdhsa_kernel {name}")
    e(f"  .amdhsa_next_free_vgpr {vgpr}")
    e("  .amdhsa_next_free_sgpr 102")
    e(f"  .amdhsa_accum_offset {accum}")
    e("  .amdhsa_group_segment_fixed_size 0")
    e("  .amdhsa_kernarg_size 136")
    e("  .amdhsa_user_sgpr_count 2")
    e("  .amdhsa_user_sgpr_kernarg_segment_ptr 1")
    e("  .amdhsa_system_sgpr_workgroup_id_x 1")
    e(".end_amdhsa_kernel")

def main():
    hdr = open("gated_mix__ssm_conv_s5__glu_gated_swiglu__prompt.s.ref").read().split("\n")
    for l in hdr:
        if l.startswith("; @launch"): break
        e(l)
    e("; @launch kernel=gm_phase1_kernel grid=(256,1,1) block=(256,1,1) lds=139264")
    e("; @launch kernel=gm_phase2_kernel grid=(256,1,1) block=(256,1,1) lds=163840")
    e('.amdgcn_target "amdgcn-amd-amdhsa--gfx950"')
    e(".text")
    kernel1()
    kernel2()
    e('.section .rodata,"a"')
    e(".p2align 6")
    desc("gm_phase1_kernel", 512, 256)
    e(".p2align 6")
    desc("gm_phase2_kernel", 256, 256)
    open(sys.argv[1] if len(sys.argv) > 1 else "gated_mix__ssm_conv_s5__glu_gated_swiglu__prompt.s", "w").write("\n".join(OUT) + "\n")

main()
```

```python
import sys

OUT = []
def e(s=""):
    if OUT and " lds" in s and s.strip().startswith("buffer_load") and " m0," in OUT[-1]:
        OUT.append("  s_nop 0")
    OUT.append(s)

class Lbl:
    n = 0
    @staticmethod
    def new(p="L"):
        Lbl.n += 1
        return f"{p}_{Lbl.n}"

WS_HMID = 0x0;        SZ_HMID = 2048*3584*2
WS_HHI  = 0x1000000;  SZ_H = 2048*2048*2
WS_HLO  = 0x1800000
WS_T    = 0x2000000;  SZ_T = 2048*1024*2
WS_G    = 0x2400000;  SZ_G = 2048*4
WS_AGG  = 0x2410000;  SZ_AGG = 8*512*16

P_X, P_LRE, P_LIM, P_BRE, P_BIM, P_CRE, P_CIM, P_LDT = 4, 6, 8, 10, 12, 14, 16, 18
P_DSK, P_BX, P_W1, P_W3, P_W2, P_GW, P_OUT, P_DBG = 20, 22, 24, 26, 28, 30, 32, 34
P_WS = 36

def srd(d, p, nbytes, off=0):
    if off:
        e(f"  s_add_u32 s{d}, s{p}, 0x{off:x}")
        e(f"  s_addc_u32 s{d+1}, s{p+1}, 0")
    else:
        e(f"  s_mov_b32 s{d}, s{p}")
        e(f"  s_mov_b32 s{d+1}, s{p+1}")
    e(f"  s_mov_b32 s{d+2}, 0x{nbytes:x}")
    e(f"  s_mov_b32 s{d+3}, 0x00020000")

def load_ptrs():
    e("  s_load_dwordx16 s[4:19], s[0:1], 0")
    e("  s_load_dwordx16 s[20:35], s[0:1], 64")
    e("  s_load_dwordx2 s[36:37], s[0:1], 128")

def vr(b, n=4): return f"v[{b}:{b+n-1}]"
def ar(b, n=4): return f"a[{b}:{b+n-1}]"

def interleave(mfmas, fillers, frac=0.8):
    M = len(mfmas); F = len(fillers)
    span = max(1, int(M*frac))
    done = 0
    for i, m in enumerate(mfmas):
        e("  " + m)
        want = min(F, ((i+1)*F + span - 1)//span)
        while done < want:
            f = fillers[done]; done += 1
            if isinstance(f, str): e("  " + f)
            else:
                for x in f: e("  " + x)
    while done < F:
        f = fillers[done]; done += 1
        if isinstance(f, str): e("  " + f)
        else:
            for x in f: e("  " + x)

PROF = len(sys.argv) > 2 and sys.argv[2] == "prof"
import os
EXP = os.environ.get("EXP", "")
STAMP = dict(t=14, regs=[16,17,20,21,22,23,28,29,32,33])
def stamp(i):
    if not PROF: return
    t = STAMP["t"]
    e(f"  s_memrealtime s[{t}:{t+1}]" if os.environ.get("RT") else f"  s_memtime s[{t}:{t+1}]")
    e("  s_waitcnt lgkmcnt(0)")
    e(f"  s_mov_b32 s{STAMP['regs'][i]}, s{t}")
def stamp_flush(kid, n):
    if not PROF: return
    srd(48, P_WS, 0x100000, 0x3000000 + kid*0x10000)
    t = STAMP["t"]
    e(f"  s_lshl_b32 s{t}, s2, 8")
    e(f"  s_lshl_b32 s{t+1}, s56, 6")
    e(f"  s_add_u32 s{t}, s{t}, s{t+1}")
    e("  v_mov_b32 v251, 0")
    for i in range(n):
        e(f"  v_mov_b32 v250, s{STAMP['regs'][i]}")
        e(f"  buffer_store_dword v250, v251, s[48:51], s{t} offen offset:{i*4}")
        e("  s_waitcnt vmcnt(0)")

def bf16_round(dst, src, tmp):
    e(f"  v_cvt_pk_bf16_f32 v{tmp}, v{src}, v{src}")
    e(f"  v_lshlrev_b32 v{dst}, 16, v{tmp}")

def mix(reads, dma):
    groups = []
    i = 0
    while i < len(dma):
        f = dma[i]
        txt = f if isinstance(f, str) else " ".join(f)
        if " m0," in txt and i + 1 < len(dma):
            groups.append([dma[i], dma[i+1]]); i += 2
        else:
            groups.append([dma[i]]); i += 1
    out = []
    n = len(reads); g = len(groups)
    gi = 0
    for k, r in enumerate(reads):
        out.append(r)
        want = ((k+1)*g)//n
        while gi < want:
            out += groups[gi]; gi += 1
    while gi < g:
        out += groups[gi]; gi += 1
    return out

def flat(fl):
    for f in fl:
        if isinstance(f, str): e("  " + f)
        else:
            for x in f: e("  " + x)

def kernel1():
    K = "gm_phase1_kernel"
    e(f".globl {K}\n.p2align 8\n.type {K},@function\n{K}:")
    Lend = "K1_end"
    e("  s_cmp_ge_u32 s2, 256")
    e(f"  s_cbranch_scc1 {Lend}")
    load_ptrs()
    e("  v_and_b32 v1, 63, v0")
    e("  v_lshrrev_b32 v2, 6, v0")
    e("  s_nop 0")
    e("  v_readfirstlane_b32 s56, v2")
    e("  v_and_b32 v3, 15, v1")
    e("  v_lshrrev_b32 v4, 4, v1")
    e("  s_lshr_b32 s57, s2, 3")
    e("  s_and_b32 s57, s57, 7")
    e("  s_and_b32 s58, s2, 7")
    e("  s_lshl_b32 s58, s58, 2")
    e("  s_lshr_b32 s59, s2, 6")
    e("  s_add_u32 s58, s58, s59")
    NBUF = 4; STG = 34816; D = 9
    OFF_W = 16384; OFF_S = 30720
    V_DA = 8
    V_DW = 12
    V_DS = 16
    V_RA = 17; V_RW = 18; V_RS = 19
    AFR = 32
    SACC = 64
    GACC = 128
    UACC = 0
    FR = 112
    TMP = 20
    e("  s_lshl_b32 s73, s57, 19")
    for j in range(4):
        e(f"  s_lshl_b32 s74, s56, 8")
        e(f"  s_add_u32 s74, s74, {j*64}")
        e(f"  v_add_u32 v20, s74, v1")
        e(f"  v_lshrrev_b32 v21, 2, v20")
        e(f"  v_and_b32 v22, 3, v20")
        e(f"  v_bfe_u32 v23, v21, 3, 1")
        e(f"  v_mul_u32_u24 v23, 3, v23")
        e(f"  v_xor_b32 v22, v22, v23")
        e(f"  v_lshlrev_b32 v21, 11, v21")
        e(f"  v_lshl_add_u32 v21, v22, 4, v21")
        e(f"  v_add_u32 v{V_DA+j}, s73, v21")
    e("  s_mul_i32 s75, s58, 224")
    e("  s_and_b32 s76, s56, 1")
    e("  s_lshl_b32 s76, s76, 2")
    e("  s_lshr_b32 s77, s56, 1")
    e("  s_mul_i32 s77, s77, 7168")
    e(f"  s_add_u32 s77, s77, {OFF_W}")
    for j in range(4):
        e(f"  s_add_u32 s74, s76, {j}")
        e(f"  s_min_u32 s74, s74, 6")
        e(f"  s_lshl_b32 s78, s74, 10")
        e(f"  s_add_u32 s{66+j}, s78, s77")
        e(f"  s_lshl_b32 s74, s74, 6")
        e(f"  v_add_u32 v20, s74, v1")
        e(f"  v_mul_u32_u24 v21, 4682, v20")
        e(f"  v_lshrrev_b32 v21, 16, v21")
        e(f"  v_mul_u32_u24 v22, 14, v21")
        e(f"  v_sub_u32 v22, v20, v22")
        e(f"  v_and_b32 v23, 0x13, v21")
        e(f"  v_bfe_u32 v24, v21, 2, 1")
        e(f"  v_lshl_or_b32 v23, v24, 3, v23")
        e(f"  v_bfe_u32 v24, v21, 3, 1")
        e(f"  v_lshl_or_b32 v23, v24, 2, v23")
        e(f"  v_mul_u32_u24 v23, 7168, v23")
        e(f"  v_lshl_add_u32 v23, v22, 4, v23")
        e(f"  v_add_u32 v{V_DW+j}, s75, v23")
    e("  s_lshl_b32 s74, s56, 6")
    e("  v_add_u32 v20, s74, v1")
    e("  v_lshrrev_b32 v21, 2, v20")
    e("  v_and_b32 v22, 3, v20")
    e("  v_bfe_u32 v23, v21, 3, 1")
    e("  v_mul_u32_u24 v23, 3, v23")
    e("  v_xor_b32 v22, v22, v23")
    e("  v_and_b32 v21, 31, v21")
    e("  v_lshlrev_b32 v21, 11, v21")
    e("  v_lshl_add_u32 v21, v22, 4, v21")
    e("  s_lshl_b32 s74, s58, 16")
    e(f"  v_add_u32 v{V_DS}, s74, v21")
    e("  s_lshl_b32 s70, s56, 12")
    e("  s_lshl_b32 s80, s56, 10")
    e(f"  s_add_u32 s80, s80, {OFF_S}")
    e("  v_bfe_u32 v20, v1, 3, 1")
    e("  v_mul_u32_u24 v20, 3, v20")
    e("  v_xor_b32 v20, v20, v4")
    e("  v_lshlrev_b32 v20, 4, v20")
    e("  v_lshl_add_u32 v20, v3, 6, v20")
    e(f"  v_add_u32 v{V_RA}, s70, v20")
    e(f"  v_add_u32 v{V_RS}, {OFF_S}, v20")
    e("  v_bfe_u32 v20, v1, 5, 1")
    e("  v_lshlrev_b32 v20, 4, v20")
    e("  v_bfe_u32 v21, v1, 4, 1")
    e("  v_lshl_add_u32 v20, v21, 2, v20")
    e("  v_bfe_u32 v21, v1, 2, 2")
    e("  v_add_u32 v20, v20, v21")
    e("  v_mul_u32_u24 v20, 224, v20")
    e("  v_and_b32 v21, 3, v1")
    e("  v_lshl_add_u32 v20, v21, 3, v20")
    e(f"  v_add_u32 v{V_RW}, {OFF_W}, v20")
    for r in (62, 63, 64, 65, 71): e(f"  s_mov_b32 s{r}, 0")
    e("  s_waitcnt lgkmcnt(0)")
    stamp(0)
    srd(40, P_X, 2048*2048)
    e("  s_cmp_lt_u32 s56, 2")
    e(f"  s_cselect_b32 s44, s{P_W1}, s{P_W3}")
    e(f"  s_cselect_b32 s45, s{P_W1+1}, s{P_W3+1}")
    e(f"  s_mov_b32 s46, 0x{1024*7168:x}")
    e("  s_mov_b32 s47, 0x00020000")
    e(f"  s_cselect_b32 s96, s{P_BRE}, s{P_BIM}")
    e(f"  s_cselect_b32 s97, s{P_BRE+1}, s{P_BIM+1}")
    e(f"  s_mov_b32 s98, 0x{1024*2048:x}")
    e("  s_mov_b32 s99, 0x00020000")

    def dma_stage():
        f = []
        for j in range(4):
            f.append([f"s_add_u32 s79, s62, s70", f"s_add_u32 m0, s79, {j*1024}"] if j == 0 else [f"s_add_u32 m0, s79, {j*1024}"])
            f.append(f"buffer_load_dwordx4 v{V_DA+j}, s[40:43], s63 offen lds")
        for j in range(4):
            f.append(f"s_add_u32 m0, s62, s{66+j}")
            f.append(f"buffer_load_dwordx4 v{V_DW+j}, s[44:47], s64 offen lds")
        f.append(f"s_add_u32 m0, s62, s80")
        f.append(f"buffer_load_dwordx4 v{V_DS}, s[96:99], s63 offen lds")
        f.append(["s_add_u32 s63, s63, 64", f"s_add_u32 s64, s64, {32*7168}", "s_add_u32 s65, s65, 1"])
        f.append([f"s_add_u32 s62, s62, {STG}", f"s_cmp_ge_u32 s62, {NBUF*STG}", "s_cselect_b32 s62, 0, s62"])
        f.append(["s_cmp_ge_u32 s65, 32", "s_cselect_b32 s42, 0, s42", "s_cselect_b32 s46, 0, s46", "s_cselect_b32 s98, 0, s98"])
        return f
    flat(dma_stage())
    srd(48, P_GW, 2048)
    e("  s_lshl_b32 s60, s2, 3")
    e("  s_lshl_b32 s61, s56, 1")
    e("  s_add_u32 s60, s60, s61")
    e("  s_lshl_b32 s61, s60, 11")
    e("  v_lshlrev_b32 v5, 5, v1")
    e("  buffer_load_dwordx4 v[20:23], v5, s[48:51], 0 offen")
    e("  buffer_load_dwordx4 v[24:27], v5, s[48:51], 0 offen offset:16")
    e("  buffer_load_dwordx4 v[240:243], v5, s[40:43], s61 offen")
    e("  buffer_load_dwordx4 v[244:247], v5, s[40:43], s61 offen offset:16")
    e("  buffer_load_dwordx4 v[248:251], v5, s[40:43], s61 offen offset:2048")
    e("  buffer_load_dwordx4 v[252:255], v5, s[40:43], s61 offen offset:2064")
    e("  s_lshl_b32 s74, s58, 6")
    e("  v_lshl_add_u32 v28, v3, 2, s74")
    srd(48, P_LRE, 2048)
    e("  buffer_load_dword v29, v28, s[48:51], 0 offen")
    srd(48, P_LIM, 2048)
    e("  buffer_load_dword v30, v28, s[48:51], 0 offen")
    srd(48, P_LDT, 2048)
    e("  buffer_load_dword v31, v28, s[48:51], 0 offen")
    zer = []
    for i in range(112):
        zer.append(f"v_mov_b32 v{GACC+i}, 0")
        zer.append(f"v_accvgpr_write_b32 a{UACC+i}, 0")
    for i in range(64): zer.append(f"v_mov_b32 v{SACC+i}, 0")
    dl = []
    for s_ in range(NBUF-1): dl += dma_stage()
    interleave(zer, dl, 1.0)

    def g_compute():
        for row in range(2):
            e(f"  v_mov_b32 v{28+row}, 0")
            for d in range(8):
                xv = 240 + row*8 + d; gv = 20 + d
                e(f"  v_lshlrev_b32 v32, 16, v{xv}")
                e(f"  v_lshlrev_b32 v33, 16, v{gv}")
                e(f"  v_and_b32 v34, 0xffff0000, v{xv}")
                e(f"  v_and_b32 v35, 0xffff0000, v{gv}")
                e(f"  v_pk_mul_f32 v[32:33], v[32:33], v[32:33] op_sel:[0,1] op_sel_hi:[0,1]") if False else None
                e(f"  v_mul_f32 v32, v32, v33")
                e(f"  v_mul_f32 v34, v34, v35")
                e(f"  v_cvt_pk_bf16_f32 v32, v32, v34")
                e(f"  v_lshlrev_b32 v33, 16, v32")
                e(f"  v_and_b32 v34, 0xffff0000, v32")
                e(f"  v_add_f32 v{28+row}, v{28+row}, v33")
                e(f"  v_add_f32 v{28+row}, v{28+row}, v34")
        for off in (0x041F, 0x081F, 0x101F, 0x201F, 0x401F):
            e(f"  ds_swizzle_b32 v30, v28 offset:0x{off:04X}")
            e(f"  ds_swizzle_b32 v31, v29 offset:0x{off:04X}")
            e("  s_waitcnt lgkmcnt(0)")
            e("  v_add_f32 v28, v28, v30")
            e("  v_add_f32 v29, v29, v31")
        e("  s_nop 1")
        e("  v_readlane_b32 s81, v28, 32")
        e("  v_readlane_b32 s82, v29, 32")
        e("  s_nop 1")
        e("  v_add_f32 v28, s81, v28")
        e("  v_add_f32 v29, s82, v29")
        srd(48, P_WS, SZ_G, WS_G)
        for row in range(2):
            v = 28 + row
            bf16_round(v, v, 32)
            e(f"  v_mul_f32 v33, 0xbfb8aa3b, v{v}")
            e(f"  v_exp_f32 v33, v33")
            e("  s_nop 0")
            e(f"  v_add_f32 v33, 1.0, v33")
            e(f"  v_rcp_f32 v33, v33")
            e("  s_nop 0")
            bf16_round(v, 33, 32)
        e("  s_lshl_b32 s61, s60, 2")
        e("  v_mov_b32 v33, 0")
        e("  s_mov_b64 s[82:83], exec")
        e("  s_mov_b64 exec, 1")
        e("  buffer_store_dword v28, v33, s[48:51], s61 offen")
        e("  buffer_store_dword v29, v33, s[48:51], s61 offen offset:4")
        e("  s_mov_b64 exec, s[82:83]")

    def f_act(st, mt): return AFR + st*16 + mt*4
    def f_w(st, nt): return FR + st*72 + nt*4
    def reads(st):
        r = []
        for mt in range(4):
            r.append(f"ds_read_b128 {vr(f_act(st,mt))}, v{V_RA} offset:{mt*1024}")
        for nt in range(14):
            base = (nt % 7)*32 + (7168 if nt >= 7 else 0)
            b = f_w(st, nt)
            r.append(f"ds_read_b64_tr_b16 {ar(b,2)}, v{V_RW} offset:{base}")
            r.append(f"ds_read_b64_tr_b16 {ar(b+2,2)}, v{V_RW} offset:{base+8*224}")
        for q in range(4):
            r.append(f"ds_read_b128 {ar(f_w(st,14+q))}, v{V_RS} offset:{q*1024}")
        return r
    def mfmas(st):
        m = []
        for nt in range(18):
            for mt in range(4):
                if nt < 7: acc = vr(GACC + (nt*4+mt)*4)
                elif nt < 14: acc = ar(UACC + ((nt-7)*4+mt)*4)
                else: acc = vr(SACC + ((nt-14)*4+mt)*4)
                m.append(f"v_mfma_f32_16x16x32_bf16 {acc}, {ar(f_w(st,nt))}, {vr(f_act(st,mt))}, {acc}")
        return m
    def adv_read():
        return [["s_add_u32 s71, s71, 1", f"s_cmp_ge_u32 s71, {NBUF}", f"s_mov_b32 s72, {STG}", f"s_cselect_b32 s72, {-(NBUF-1)*STG & 0xffffffff}, s72", "s_cselect_b32 s71, 0, s71"],
                f"v_add_u32 v{V_RA}, s72, v{V_RA}", f"v_add_u32 v{V_RW}, s72, v{V_RW}", f"v_add_u32 v{V_RS}, s72, v{V_RS}"]
    e(f"  s_waitcnt vmcnt({(NBUF-1)*D + 9})")
    e("  s_barrier")
    stamp(1)
    flat(reads(0))
    e("  s_mov_b32 s84, 0")
    Lloop = Lbl.new("K1_main")
    e(f"{Lloop}:")
    for half in range(2):
        e(f"  s_waitcnt vmcnt({(NBUF-2)*D}) lgkmcnt(0)")
        if "nobar" not in EXP: e("  s_barrier")
        fl = adv_read() + mix(reads(1-half), dma_stage())
        interleave(mfmas(half), fl, 0.95)
    e("  s_add_u32 s84, s84, 1")
    e("  s_cmp_lt_u32 s84, 16")
    e(f"  s_cbranch_scc1 {Lloop}")
    e("  s_waitcnt vmcnt(0) lgkmcnt(0)")
    e("  s_barrier")
    stamp(2)
    e("  v_mov_b32 v36, v29\n  v_mov_b32 v37, v30\n  v_mov_b32 v38, v31")
    g_compute()

    UST = 272; EOFF = 69632
    e("  s_lshl_b32 s74, s56, 6")
    e("  v_add_u32 v20, s74, v3")
    e(f"  v_mul_u32_u24 v20, {UST}, v20")
    e("  v_lshl_add_u32 v20, v4, 4, v20")
    for p in range(2):
        for j in range(2):
            for mt in range(4):
                e(f"  ds_write_b128 v20, {vr(SACC + p*32 + (j*4+mt)*4)} offset:{mt*16*UST + j*64 + p*128}")
    e("  s_lshl_b32 s74, s56, 2")
    e("  v_add_u32 v34, s74, v4")
    e("  s_lshl_b32 s74, s58, 6")
    e("  v_lshl_add_u32 v35, v3, 2, s74")
    e("  s_waitcnt lgkmcnt(0)")
    e("  s_barrier")
    e(f"  v_lshlrev_b32 v62, 4, v34")
    e(f"  v_mul_u32_u24 v62, {UST}, v62")
    e("  v_lshl_add_u32 v62, v3, 3, v62")
    def u_reads():
        for i in range(16):
            e(f"  ds_read_b64 v[{64+4*i}:{65+4*i}], v62 offset:{i*UST}")
            e(f"  ds_read_b64 v[{66+4*i}:{67+4*i}], v62 offset:{i*UST+128}")
    u_reads()
    for (src, dst) in ((36, 40), (37, 42), (38, 44)):
        e(f"  v_lshlrev_b32 v{dst}, 16, v{src}")
        e(f"  v_and_b32 v{dst+1}, 0xffff0000, v{src}")
    for c in range(2):
        e(f"  v_mul_f32 v{44+c}, 0x3fb8aa3b, v{44+c}")
        e(f"  v_exp_f32 v{44+c}, v{44+c}")
        e("  s_nop 0")
        bf16_round(44+c, 44+c, 32)
        e(f"  v_mul_f32 v46, v{44+c}, v{40+c}")
        e(f"  v_mul_f32 v47, v{44+c}, v{42+c}")
        e(f"  v_mul_f32 v46, 0x3fb8aa3b, v46")
        e(f"  v_exp_f32 v46, v46")
        e(f"  v_mul_f32 v47, 0.15915494, v47")
        e(f"  v_fract_f32 v47, v47")
        e(f"  v_cos_f32 v48, v47")
        e(f"  v_sin_f32 v49, v47")
        e("  s_nop 0")
        e(f"  v_mul_f32 v{50+c}, v46, v48")
        e(f"  v_mul_f32 v{52+c}, v46, v49")
        e(f"  v_mul_f32 v46, v{40+c}, v{40+c}")
        e(f"  v_fmac_f32 v46, v{42+c}, v{42+c}")
        e(f"  v_rcp_f32 v46, v46")
        e(f"  v_add_f32 v47, -1.0, v{50+c}")
        e(f"  v_mul_f32 v48, v47, v{40+c}")
        e(f"  v_fmac_f32 v48, v{52+c}, v{42+c}")
        e(f"  v_mul_f32 v49, v{52+c}, v{40+c}")
        e(f"  v_fma_f32 v49, -v47, v{42+c}, v49")
        e(f"  v_mul_f32 v{54+c}, v48, v46")
        e(f"  v_mul_f32 v{56+c}, v49, v46")
    for c in range(2):
        e(f"  v_xor_b32 v{58+c}, 0x80000000, v{52+c}")
        e(f"  v_xor_b32 v{60+c}, 0x80000000, v{56+c}")
    def cmul(dr, di, ar_, ai, br, bi, nbi, tr):
        e(f"  v_pk_mul_f32 v[{tr}:{tr+1}], v[{ar_}:{ar_+1}], v[{br}:{br+1}]")
        e(f"  v_pk_mul_f32 v[{tr+2}:{tr+3}], v[{ai}:{ai+1}], v[{br}:{br+1}]")
        e(f"  v_pk_fma_f32 v[{tr}:{tr+1}], v[{ai}:{ai+1}], v[{nbi}:{nbi+1}], v[{tr}:{tr+1}]")
        e(f"  v_pk_fma_f32 v[{tr+2}:{tr+3}], v[{ar_}:{ar_+1}], v[{bi}:{bi+1}], v[{tr+2}:{tr+3}]")
        e(f"  v_mov_b32 v{dr}, v{tr}\n  v_mov_b32 v{dr+1}, v{tr+1}\n  v_mov_b32 v{di}, v{tr+2}\n  v_mov_b32 v{di+1}, v{tr+3}")
    def cneg(d, s):
        e(f"  v_xor_b32 v{d}, 0x80000000, v{s}\n  v_xor_b32 v{d+1}, 0x80000000, v{s+1}")
    for k in range(2):
        e(f"  v_mov_b32 v{8+k}, v{50+k}\n  v_mov_b32 v{10+k}, v{52+k}")
    for it in range(4):
        cneg(12, 10); cmul(8, 10, 8, 10, 8, 10, 12, 20)
    cneg(12, 10)
    for k in range(2):
        e(f"  v_mov_b32 v{14+k}, v{8+k}\n  v_mov_b32 v{16+k}, v{10+k}")
    for it in range(4):
        cneg(18, 16); cmul(14, 16, 14, 16, 14, 16, 18, 20)
    cneg(18, 16)
    e("  s_waitcnt lgkmcnt(0)")
    for k in range(4): e(f"  v_mov_b32 v{24+k}, 0")
    def hstep(bur, bui):
        e(f"  v_pk_fma_f32 v[20:21], v[24:25], v[50:51], v[{bur}:{bur+1}]")
        e(f"  v_pk_fma_f32 v[22:23], v[26:27], v[50:51], v[{bui}:{bui+1}]")
        e(f"  v_pk_fma_f32 v[20:21], v[26:27], v[58:59], v[20:21]")
        e(f"  v_pk_fma_f32 v[26:27], v[24:25], v[52:53], v[22:23]")
        e(f"  v_mov_b32 v24, v20\n  v_mov_b32 v25, v21")
    for i in range(16):
        ur = 64+4*i; ui = 66+4*i
        e(f"  v_pk_mul_f32 v[28:29], v[{ur}:{ur+1}], v[54:55]")
        e(f"  v_pk_mul_f32 v[30:31], v[{ui}:{ui+1}], v[54:55]")
        e(f"  v_pk_fma_f32 v[28:29], v[{ui}:{ui+1}], v[60:61], v[28:29]")
        e(f"  v_pk_fma_f32 v[{ui}:{ui+1}], v[{ur}:{ur+1}], v[56:57], v[30:31]")
        e(f"  v_mov_b32 v{ur}, v28\n  v_mov_b32 v{ur+1}, v29")
        e(f"  ds_write_b64 v62, v[{ur}:{ur+1}] offset:{i*UST}")
        e(f"  ds_write_b64 v62, v[{ui}:{ui+1}] offset:{i*UST+128}")
        hstep(ur, ui)
    e("  v_lshlrev_b32 v39, 8, v34")
    e("  v_lshl_add_u32 v39, v3, 4, v39")
    e(f"  v_add_u32 v39, {EOFF}, v39")
    e(f"  ds_write_b128 v39, v[24:27]")
    e("  s_waitcnt lgkmcnt(0)")
    e("  s_barrier")
    e("  v_lshlrev_b32 v63, 4, v3")
    e(f"  v_add_u32 v63, {EOFF}, v63")
    def seg_reads():
        for i in range(16):
            e(f"  ds_read_b128 v[{64+4*i}:{67+4*i}], v63 offset:{i*256}")
        e("  s_waitcnt lgkmcnt(0)")
    seg_reads()
    def horner(init_zero):
        if init_zero:
            for k in range(4): e(f"  v_mov_b32 v{24+k}, 0")
        for i in range(16):
            if not init_zero:
                e(f"  v_cmp_eq_u32 vcc, {i}, v34")
                e("  s_nop 1")
                for k in range(4): e(f"  v_cndmask_b32 v{28+k}, v{28+k}, v{24+k}, vcc")
            er = 64+4*i
            e(f"  v_pk_fma_f32 v[20:21], v[24:25], v[8:9], v[{er}:{er+1}]")
            e(f"  v_pk_fma_f32 v[22:23], v[26:27], v[8:9], v[{er+2}:{er+3}]")
            e(f"  v_pk_fma_f32 v[20:21], v[26:27], v[12:13], v[20:21]")
            e(f"  v_pk_fma_f32 v[26:27], v[24:25], v[10:11], v[22:23]")
            e(f"  v_mov_b32 v24, v20\n  v_mov_b32 v25, v21")
    horner(True)
    srd(40, P_WS, SZ_AGG, WS_AGG)
    srd(44, P_DBG, 256)
    e("  s_lshl_b32 s74, s58, 8")
    e("  v_lshl_add_u32 v39, v3, 4, s74")
    e("  s_lshl_b32 s75, s57, 13")
    e("  s_lshl_b32 s76, s58, 2")
    Lnp = Lbl.new("K1_nopub")
    e("  s_cmp_lg_u32 s56, 0")
    e(f"  s_cbranch_scc1 {Lnp}")
    e("  s_mov_b64 s[82:83], exec")
    e("  s_mov_b64 exec, 0xffff")
    e("  buffer_store_dwordx4 v[24:27], v39, s[40:43], s75 offen sc1")
    e("  s_waitcnt vmcnt(0)")
    e("  s_mov_b64 exec, 1")
    e("  s_lshl_b32 s77, 1, s57")
    e("  v_mov_b32 v20, s77")
    e("  v_mov_b32 v21, 0")
    e("  buffer_atomic_or v20, v21, s[44:47], s76 offen sc1")
    e("  s_mov_b64 exec, s[82:83]")
    e(f"{Lnp}:")
    stamp(3)

    T = 64
    srd(48, P_WS, SZ_HMID, WS_HMID)
    e("  s_lshl_b32 s74, s57, 1")
    e("  s_lshr_b32 s77, s56, 1")
    e("  s_add_u32 s74, s74, s77")
    e(f"  s_mul_i32 s74, s74, {56*16384}")
    e("  s_and_b32 s77, s56, 1")
    e("  s_lshl_b32 s77, s77, 13")
    e("  s_add_u32 s74, s74, s77")
    e(f"  v_lshlrev_b32 v{T}, 7, v3")
    e(f"  v_lshl_add_u32 v{T}, v4, 3, v{T}")
    e(f"  v_add_u32 v98, s74, v{T}")
    e("  s_mul_i32 s77, s58, 112")
    for nt in range(7):
        e(f"  s_add_u32 s78, s77, {nt*16}")
        e(f"  s_lshr_b32 s79, s78, 6")
        e(f"  s_lshl_b32 s79, s79, 14")
        e(f"  s_and_b32 s78, s78, 63")
        e(f"  s_lshl_b32 s78, s78, 1")
        e(f"  s_add_u32 s{62+nt}, s79, s78")
    e("  s_mov_b32 s74, 0xbfb8aa3b")
    e("  s_mov_b32 s75, 0xbfb8aa3b")
    e("  s_mov_b32 s78, 1.0")
    e("  s_mov_b32 s79, 1.0")
    def unpk(dst, srcs):
        for i, (src, hi) in enumerate(srcs):
            if hi: e(f"  v_and_b32 v{dst+i}, 0xffff0000, v{src}")
            else:  e(f"  v_lshlrev_b32 v{dst+i}, 16, v{src}")
    for mt in range(4):
        if mt: e(f"  v_add_u32 v98, {16*128}, v98")
        for nt in range(7):
            g = GACC + (nt*4+mt)*4; u = UACC + (nt*4+mt)*4
            e(f"  v_cvt_pk_bf16_f32 v{T}, v{g}, v{g+1}")
            e(f"  v_cvt_pk_bf16_f32 v{T+1}, v{g+2}, v{g+3}")
            unpk(T+2, ((T,0),(T,1),(T+1,0),(T+1,1)))
            e(f"  v_pk_mul_f32 v[{T+6}:{T+7}], v[{T+2}:{T+3}], s[74:75]")
            e(f"  v_pk_mul_f32 v[{T+8}:{T+9}], v[{T+4}:{T+5}], s[74:75]")
            for i in range(4): e(f"  v_exp_f32 v{T+6+i}, v{T+6+i}")
            for i in range(4): e(f"  v_accvgpr_read_b32 v{T+14+i}, a{u+i}")
            e(f"  v_pk_add_f32 v[{T+6}:{T+7}], v[{T+6}:{T+7}], s[78:79]")
            e(f"  v_pk_add_f32 v[{T+8}:{T+9}], v[{T+8}:{T+9}], s[78:79]")
            for i in range(4): e(f"  v_rcp_f32 v{T+6+i}, v{T+6+i}")
            e(f"  v_cvt_pk_bf16_f32 v{T+12}, v{T+14}, v{T+15}")
            e(f"  v_cvt_pk_bf16_f32 v{T+13}, v{T+16}, v{T+17}")
            e(f"  v_pk_mul_f32 v[{T+6}:{T+7}], v[{T+2}:{T+3}], v[{T+6}:{T+7}]")
            e(f"  v_pk_mul_f32 v[{T+8}:{T+9}], v[{T+4}:{T+5}], v[{T+8}:{T+9}]")
            e(f"  v_cvt_pk_bf16_f32 v{T+10}, v{T+6}, v{T+7}")
            e(f"  v_cvt_pk_bf16_f32 v{T+11}, v{T+8}, v{T+9}")
            unpk(T+2, ((T+10,0),(T+10,1),(T+11,0),(T+11,1)))
            unpk(T+6, ((T+12,0),(T+12,1),(T+13,0),(T+13,1)))
            e(f"  v_pk_mul_f32 v[{T+2}:{T+3}], v[{T+2}:{T+3}], v[{T+6}:{T+7}]")
            e(f"  v_pk_mul_f32 v[{T+4}:{T+5}], v[{T+4}:{T+5}], v[{T+8}:{T+9}]")
            t = 90 + ((mt*7+nt) % 4)*2
            e(f"  v_cvt_pk_bf16_f32 v{t}, v{T+2}, v{T+3}")
            e(f"  v_cvt_pk_bf16_f32 v{t+1}, v{T+4}, v{T+5}")
            e(f"  buffer_store_dwordx2 {vr(t,2)}, v98, s[48:51], s{62+nt} offen")
    stamp(4)

    for k in range(4): e(f"  v_mov_b32 v{24+k}, 0")
    Lnw = Lbl.new("K1_nowait"); Lpoll = Lbl.new("K1_poll"); Lgot = Lbl.new("K1_got")
    e("  s_cmp_eq_u32 s57, 0")
    e(f"  s_cbranch_scc1 {Lnw}")
    e("  s_lshl_b32 s77, 1, s57")
    e("  s_sub_u32 s77, s77, 1")
    e("  s_mov_b32 s78, 0")
    e("  v_mov_b32 v21, 0")
    e(f"{Lpoll}:")
    e("  buffer_load_dword v20, v21, s[44:47], s76 offen sc1")
    e("  s_waitcnt vmcnt(0)")
    e("  v_readfirstlane_b32 s79, v20")
    e("  s_add_u32 s78, s78, 1")
    e("  s_and_b32 s79, s79, s77")
    e("  s_cmp_eq_u32 s79, s77")
    e(f"  s_cbranch_scc1 {Lgot}")
    e("  s_cmp_gt_u32 s78, 0x100000")
    e(f"  s_cbranch_scc1 {Lgot}")
    e("  s_sleep 2")
    e(f"  s_branch {Lpoll}")
    e(f"{Lgot}:")
    Lld = Lbl.new("K1_aggld")
    for i in range(7):
        if i:
            e(f"  s_cmp_le_u32 s57, {i}")
            e(f"  s_cbranch_scc1 {Lld}")
        e(f"  s_mov_b32 s77, {i*8192}")
        e(f"  buffer_load_dwordx4 v[{64+4*i}:{67+4*i}], v39, s[40:43], s77 offen sc1")
    e(f"{Lld}:")
    e("  s_waitcnt vmcnt(0)")
    for i in range(7):
        if i:
            e(f"  s_cmp_le_u32 s57, {i}")
            e(f"  s_cbranch_scc1 {Lnw}")
        er = 64+4*i
        e(f"  v_pk_fma_f32 v[20:21], v[24:25], v[14:15], v[{er}:{er+1}]")
        e(f"  v_pk_fma_f32 v[22:23], v[26:27], v[14:15], v[{er+2}:{er+3}]")
        e(f"  v_pk_fma_f32 v[20:21], v[26:27], v[18:19], v[20:21]")
        e(f"  v_pk_fma_f32 v[26:27], v[24:25], v[16:17], v[22:23]")
        e(f"  v_mov_b32 v24, v20\n  v_mov_b32 v25, v21")
    e(f"{Lnw}:")
    stamp(5)
    seg_reads()
    horner(False)
    u_reads()
    for k in range(4): e(f"  v_mov_b32 v{24+k}, v{28+k}")
    srd(48, P_WS, SZ_H, WS_HHI)
    srd(52, P_WS, SZ_H, WS_HLO)
    e("  s_lshl_b32 s74, s57, 20")
    e("  s_lshr_b32 s77, s58, 1")
    e("  s_lshl_b32 s77, s77, 14")
    e("  s_add_u32 s74, s74, s77")
    e("  s_and_b32 s77, s58, 1")
    e("  s_lshl_b32 s77, s77, 6")
    e("  s_add_u32 s74, s74, s77")
    e("  v_lshrrev_b32 v39, 3, v34")
    e("  v_lshlrev_b32 v39, 19, v39")
    e("  v_and_b32 v28, 7, v34")
    e("  v_lshl_add_u32 v39, v28, 11, v39")
    e("  v_lshl_add_u32 v39, v3, 2, v39")
    e("  v_add_u32 v39, s74, v39")
    e("  s_waitcnt lgkmcnt(0)")
    for i in range(16):
        hstep(64+4*i, 66+4*i)
        o = 240 + (i % 4)*4
        e(f"  v_cvt_pk_bf16_f32 v{o}, v24, v25")
        e(f"  v_cvt_pk_bf16_f32 v{o+2}, -v26, -v27")
        e(f"  v_lshlrev_b32 v28, 16, v{o}")
        e(f"  v_and_b32 v29, 0xffff0000, v{o}")
        e(f"  v_lshlrev_b32 v30, 16, v{o+2}")
        e(f"  v_and_b32 v31, 0xffff0000, v{o+2}")
        e(f"  v_sub_f32 v28, v24, v28")
        e(f"  v_sub_f32 v29, v25, v29")
        e(f"  v_sub_f32_e64 v30, -v26, v30")
        e(f"  v_sub_f32_e64 v31, -v27, v31")
        e(f"  v_cvt_pk_bf16_f32 v{o+1}, v28, v29")
        e(f"  v_cvt_pk_bf16_f32 v{o+3}, v30, v31")
        e(f"  s_mov_b32 s74, 262144")
        e(f"  buffer_store_dword v{o}, v39, s[48:51], 0 offen offset:{i*128}")
        e(f"  buffer_store_dword v{o+2}, v39, s[48:51], s74 offen offset:{i*128}")
        e(f"  buffer_store_dword v{o+1}, v39, s[52:55], 0 offen offset:{i*128}")
        e(f"  buffer_store_dword v{o+3}, v39, s[52:55], s74 offen offset:{i*128}")
    if PROF: e("  s_waitcnt vmcnt(0)")
    stamp(6)
    stamp_flush(0, 7)
    e(f"{Lend}:")
    e("  s_endpgm")

def kernel2():
    K = "gm_phase2_kernel"
    STAMP["t"] = 6; STAMP["regs"] = [8,9,10,11,12,13,18,19]
    e(f".globl {K}\n.p2align 8\n.type {K},@function\n{K}:")
    Lend = "K2_end"; LB = "K2_typeB"
    e("  s_cmp_ge_u32 s2, 256")
    e(f"  s_cbranch_scc1 {Lend}")
    load_ptrs()
    e("  v_and_b32 v1, 63, v0")
    e("  v_lshrrev_b32 v2, 6, v0")
    e("  s_nop 0")
    e("  v_readfirstlane_b32 s56, v2")
    e("  v_and_b32 v3, 15, v1")
    e("  v_lshrrev_b32 v4, 4, v1")
    e("  s_and_b32 s61, s2, 3")
    e("  s_lshr_b32 s62, s2, 3")
    e("  s_lshl_b32 s57, s61, 2")
    e("  s_lshr_b32 s63, s62, 3")
    e("  s_add_u32 s57, s57, s63")
    e("  s_and_b32 s58, s62, 7")
    e("  s_lshl_b32 s60, s57, 3")
    e("  s_add_u32 s60, s60, s58")
    e("  s_lshr_b32 s87, s56, 1")
    e("  s_and_b32 s88, s56, 1")
    e("  s_lshl_b32 s70, s56, 12")
    e("  s_waitcnt lgkmcnt(0)")
    stamp(0)
    V_RA0, V_RA1 = 20, 21
    e("  v_and_b32 v32, 7, v1")
    e("  v_xor_b32 v32, v32, v4")
    e("  v_lshlrev_b32 v32, 4, v32")
    e("  v_lshl_add_u32 v32, v3, 7, v32")
    e("  s_lshl_b32 s74, s87, 13")
    e(f"  v_add_u32 v{V_RA0}, s74, v32")
    e(f"  v_xor_b32 v{V_RA1}, 64, v{V_RA0}")
    e("  v_mov_b32 v31, v32")
    ACC = 64; FR = 128
    for i in range(64): e(f"  v_mov_b32 v{ACC+i}, 0")
    e("  s_mov_b32 s62, 0\n  s_mov_b32 s63, 0\n  s_mov_b32 s64, 0\n  s_mov_b32 s65, 0\n  s_mov_b32 s71, 0")
    def flat(fl):
        for f in fl:
            if isinstance(f, str): e("  " + f)
            else:
                for x in f: e("  " + x)
    def flat_dma(fl):
        for f in fl:
            if isinstance(f, str):
                e("  " + f)
            else:
                for x in f: e("  " + x)
    e("  s_bitcmp1_b32 s2, 2")
    e(f"  s_cbranch_scc1 {LB}")

    NB = int(os.environ.get("NBA", "4")); ST = 32768; D = 8; NST = 56
    V_DA = 8; V_DW = 12; V_RW = 24
    srd(40, P_WS, SZ_HMID, WS_HMID)
    srd(44, P_W2, 3584*2048)
    e(f"  s_mul_i32 s73, s57, {56*16384}")
    e("  s_lshl_b32 s75, s58, 8")
    for j in range(4):
        e(f"  s_lshl_b32 s74, s56, 8")
        e(f"  s_add_u32 s74, s74, {j*64}")
        e(f"  v_add_u32 v32, s74, v1")
        e(f"  v_lshrrev_b32 v33, 3, v32")
        e(f"  v_and_b32 v34, 7, v32")
        e(f"  v_and_b32 v35, 7, v33")
        e(f"  v_xor_b32 v34, v34, v35")
        e(f"  v_lshlrev_b32 v35, 7, v33")
        e(f"  v_lshl_add_u32 v35, v34, 4, v35")
        e(f"  v_add_u32 v{V_DA+j}, s73, v35")
        e(f"  v_lshrrev_b32 v33, 4, v32")
        e(f"  v_bfe_u32 v34, v32, 1, 3")
        e(f"  v_and_b32 v35, 7, v33")
        e(f"  v_xor_b32 v34, v34, v35")
        e(f"  v_lshlrev_b32 v34, 5, v34")
        e(f"  v_and_b32 v35, 1, v32")
        e(f"  v_lshl_add_u32 v34, v35, 4, v34")
        e(f"  v_and_b32 v35, 0x33, v33")
        e(f"  v_bfe_u32 v36, v33, 2, 1")
        e(f"  v_lshl_or_b32 v35, v36, 3, v35")
        e(f"  v_bfe_u32 v36, v33, 3, 1")
        e(f"  v_lshl_or_b32 v35, v36, 2, v35")
        e(f"  v_lshl_add_u32 v35, v35, 11, v34")
        e(f"  v_add_u32 v{V_DW+j}, s75, v35")
    e("  v_bfe_u32 v32, v1, 5, 1")
    e("  v_lshlrev_b32 v32, 4, v32")
    e("  v_bfe_u32 v33, v1, 4, 1")
    e("  v_lshlrev_b32 v33, 2, v33")
    e("  v_bfe_u32 v34, v1, 2, 2")
    e("  v_add_u32 v33, v33, v34")
    e("  v_add_u32 v32, v32, v33")
    e("  v_lshlrev_b32 v32, 8, v32")
    e("  v_and_b32 v34, 3, v1")
    e("  v_lshl_add_u32 v32, v34, 3, v32")
    e("  v_add_u32 v32, 16384, v32")
    e("  s_lshl_b32 s74, s88, 2")
    for j in range(4):
        e(f"  s_add_u32 s75, s74, {j}")
        e(f"  v_xor_b32 v34, s75, v33")
        e(f"  v_lshl_add_u32 v{V_RW+j}, v34, 5, v32")
    V_PA, V_PB, V_DUM = 28, 29, 30
    PFA = int(os.environ.get("PFA", "0"))
    e("  s_and_b32 s77, s56, 1")
    e("  s_and_b32 s78, s58, 3")
    e("  s_lshl_b32 s78, s78, 5")
    e("  s_lshl_b32 s74, s77, 4")
    e("  s_add_u32 s78, s78, s74")
    e("  v_add_u32 v32, s78, v3")
    e("  v_mul_u32_u24 v33, 7168, v32")
    e("  v_add_u32 v33, s73, v33")
    e("  s_and_b32 s78, s57, 3")
    e("  s_lshl_b32 s78, s78, 4")
    e("  s_lshl_b32 s74, s77, 3")
    e("  s_add_u32 s78, s78, s74")
    e("  v_lshrrev_b32 v34, 1, v3")
    e("  v_add_u32 v34, s78, v34")
    e("  v_lshlrev_b32 v34, 11, v34")
    e("  v_and_b32 v35, 1, v3")
    e("  v_lshl_add_u32 v34, v35, 7, v34")
    e("  s_lshl_b32 s75, s58, 8")
    e("  v_add_u32 v34, s75, v34")
    e("  s_cmp_lt_u32 s56, 2")
    e("  s_cselect_b32 s96, s40, s44")
    e("  s_cselect_b32 s97, s41, s45")
    e("  s_cselect_b32 s98, s42, s46")
    e("  s_mov_b32 s99, 0x00020000")
    e(f"  s_mov_b32 s90, {64*2048}")
    e(f"  s_cselect_b32 s90, 128, s90")
    e("  s_cselect_b64 vcc, -1, 0")
    e(f"  v_cndmask_b32 v{V_PA}, v34, v33, vcc")
    e(f"  s_mul_i32 s89, s90, {NB}")
    def pfA():
        if not PFA: return []
        return [f"buffer_load_dword v{V_DUM}, v{V_PA}, s[96:99], s89 offen", "s_add_u32 s89, s89, s90"]
    def dmaA0():
        f = []
        for j in range(4):
            f.append([f"s_add_u32 s79, s62, s70", f"s_add_u32 m0, s79, {j*1024}"] if j == 0 else [f"s_add_u32 m0, s79, {j*1024}"])
            f.append(f"buffer_load_dwordx4 v{V_DA+j}, s[40:43], s63 offen lds")
        return f
    def dmaA():
        f = []
        for j in range(4):
            f.append(f"s_add_u32 m0, s79, {16384+j*1024}")
            f.append(f"buffer_load_dwordx4 v{V_DW+j}, s[44:47], s64 offen lds")
        f.append(["s_add_u32 s63, s63, 16384", f"s_add_u32 s64, s64, {64*2048}", "s_add_u32 s65, s65, 1"])
        f.append([f"s_add_u32 s62, s62, {ST}", f"s_cmp_ge_u32 s62, {NB*ST}", "s_cselect_b32 s62, 0, s62"])
        f.append([f"s_cmp_ge_u32 s65, {NST}", "s_cselect_b32 s42, 0, s42", "s_cselect_b32 s46, 0, s46"])
        return f
    def a_reads(st, u):
        va = V_RA1 if u else V_RA0
        b = FR + st*32
        r = [f"ds_read_b128 {vr(b+mt*4)}, v{va} offset:{mt*2048}" for mt in range(4)]
        for j in range(4):
            r.append(f"ds_read_b64_tr_b16 {vr(b+16+j*4,2)}, v{V_RW+j} offset:{u*8192}")
            r.append(f"ds_read_b64_tr_b16 {vr(b+18+j*4,2)}, v{V_RW+j} offset:{u*8192+2048}")
        return r
    def a_mfmas(st):
        b = FR + st*32
        return [f"v_mfma_f32_16x16x32_bf16 {vr(ACC+(j*4+mt)*4)}, {vr(b+16+j*4)}, {vr(b+mt*4)}, {vr(ACC+(j*4+mt)*4)}"
                for j in range(4) for mt in range(4)]
    def advA():
        return [["s_add_u32 s71, s71, 1", f"s_cmp_ge_u32 s71, {NB}", f"s_mov_b32 s72, {ST}", f"s_cselect_b32 s72, {-(NB-1)*ST & 0xffffffff}, s72", "s_cselect_b32 s71, 0, s71"]] + \
               [f"v_add_u32 v{x}, s72, v{x}" for x in (V_RA0, V_RA1, V_RW, V_RW+1, V_RW+2, V_RW+3)]
    for s in range(NB-1): flat(dmaA0() + dmaA())
    flat(dmaA0())
    for s in range(PFA): flat(pfA())
    srd(48, P_WS, SZ_G, WS_G)
    e("  s_lshl_b32 s74, s57, 7")
    e("  s_lshl_b32 s75, s87, 6")
    e("  s_add_u32 s74, s74, s75")
    e("  v_add_u32 v32, s74, v3")
    e("  v_lshlrev_b32 v33, 2, v32")
    for mt in range(4):
        e(f"  buffer_load_dword v{40+mt}, v33, s[48:51], 0 offen offset:{mt*64}")
    srd(52, P_WS, SZ_T, WS_T)
    e("  s_lshl_b32 s74, s58, 8")
    e("  s_lshl_b32 s75, s88, 7")
    e("  s_add_u32 s74, s74, s75")
    e("  v_lshlrev_b32 v34, 11, v32")
    e("  v_lshl_add_u32 v34, v4, 3, v34")
    e("  v_add_u32 v34, s74, v34")
    e(f"  s_waitcnt vmcnt({(NB-2)*D + D//2 + 4 + PFA})")
    e("  s_barrier")
    stamp(1)
    flat(a_reads(0, 0))
    e("  s_mov_b32 s84, 0")
    Ll = Lbl.new("K2_A")
    e(f"{Ll}:")
    e("  s_waitcnt lgkmcnt(0)")
    interleave(a_mfmas(0), mix(a_reads(1, 1), dmaA() + pfA()), 0.95)
    e(f"  s_waitcnt vmcnt({(NB-2)*(D + (1 if PFA else 0)) + (1 if PFA else 0)}) lgkmcnt(0)")
    e("  s_barrier")
    interleave(a_mfmas(1), advA() + mix(a_reads(0, 0), dmaA0()), 0.95)
    e("  s_add_u32 s84, s84, 1")
    e(f"  s_cmp_lt_u32 s84, {NST}")
    e(f"  s_cbranch_scc1 {Ll}")
    stamp(2)
    for mt in range(4):
        e(f"  v_sub_f32 v{40+mt}, 1.0, v{40+mt}")
        bf16_round(40+mt, 40+mt, 44)
    for mt in range(4):
        if mt: e(f"  v_add_u32 v34, {16*2048}, v34")
        for j in range(4):
            a = ACC + (j*4+mt)*4
            e(f"  v_cvt_pk_bf16_f32 v44, v{a}, v{a+1}")
            e(f"  v_cvt_pk_bf16_f32 v45, v{a+2}, v{a+3}")
            for i, (src, hi) in enumerate(((44,0),(44,1),(45,0),(45,1))):
                if hi: e(f"  v_and_b32 v{46+i}, 0xffff0000, v{src}")
                else:  e(f"  v_lshlrev_b32 v{46+i}, 16, v{src}")
            for i in range(4): e(f"  v_mul_f32 v{46+i}, v{46+i}, v{40+mt}")
            t = 50 + (j % 4)*2
            e(f"  v_cvt_pk_bf16_f32 v{t}, v46, v47")
            e(f"  v_cvt_pk_bf16_f32 v{t+1}, v48, v49")
            e(f"  buffer_store_dwordx2 {vr(t,2)}, v34, s[52:55], 0 offen offset:{j*32} sc0 sc1")
    srd(48, P_DBG, 256)
    e("  s_lshr_b32 s74, s60, 1")
    e("  s_lshl_b32 s74, s74, 2")
    e("  s_and_b32 s75, s60, 1")
    e("  s_lshl_b32 s75, 1, s75")
    e("  s_waitcnt vmcnt(0)")
    e("  s_barrier")
    e("  s_cmp_lg_u32 s56, 0")
    e(f"  s_cbranch_scc1 K2_A_done")
    e("  s_mov_b64 exec, 1")
    e("  v_mov_b32 v20, s75")
    e("  v_mov_b32 v21, 0")
    e("  buffer_atomic_or v20, v21, s[48:51], s74 offen sc1")
    e("  s_mov_b64 exec, -1")
    e("K2_A_done:")
    stamp(3)
    stamp_flush(1, 4)
    e(f"  s_branch {Lend}")

    e(f"{LB}:")
    NB = 3; ST = 49152; D = 12; NST = 32
    V_DA = 8; V_DW = 12; V_RW0, V_RW1 = 24, 25
    srd(40, P_WS, SZ_H, WS_HHI)
    srd(48, P_WS, SZ_H, WS_HLO)
    srd(44, P_CRE, 1024*2048)
    e("  s_lshl_b32 s73, s57, 19")
    e("  s_lshl_b32 s75, s58, 18")
    for j in range(4):
        e(f"  s_lshl_b32 s74, s56, 8")
        e(f"  s_add_u32 s74, s74, {j*64}")
        e(f"  v_add_u32 v32, s74, v1")
        e(f"  v_lshrrev_b32 v33, 3, v32")
        e(f"  v_and_b32 v34, 7, v32")
        e(f"  v_and_b32 v35, 7, v33")
        e(f"  v_xor_b32 v34, v34, v35")
        e(f"  v_lshlrev_b32 v34, 4, v34")
        e(f"  v_lshl_add_u32 v35, v33, 7, v34")
        e(f"  v_add_u32 v{V_DA+j}, s73, v35")
        e(f"  v_lshl_add_u32 v35, v33, 11, v34")
        e(f"  v_add_u32 v{V_DW+j}, s75, v35")
    e("  s_lshl_b32 s74, s88, 13")
    e("  s_add_u32 s74, s74, 32768")
    e(f"  v_add_u32 v{V_RW0}, s74, v31")
    e(f"  v_xor_b32 v{V_RW1}, 64, v{V_RW0}")
    V_PA, V_PB, V_DUM = 28, 29, 30
    e("  s_and_b32 s77, s56, 1")
    e("  s_lshl_b32 s77, s77, 6")
    e("  v_add_u32 v32, s77, v1")
    e("  v_lshlrev_b32 v33, 12, v32")
    e(f"  v_add_u32 v{V_PA}, s73, v33")
    e("  v_lshlrev_b32 v33, 11, v32")
    e(f"  v_add_u32 v{V_PB}, s75, v33")
    e("  s_cmp_lt_u32 s56, 2")
    e("  s_cselect_b32 s96, s40, s48")
    e("  s_cselect_b32 s97, s41, s49")
    e("  s_mov_b32 s98, s42")
    e("  s_mov_b32 s99, 0x00020000")
    srd(92, P_CRE, 1024*2048)
    PFB = 0
    e(f"  s_mov_b32 s89, {NB*128}")
    e(f"  s_mov_b32 s90, {NB*128}")
    e(f"  s_mov_b32 s91, {NB}")
    def pfB():
        return [f"buffer_load_dword v{V_DUM}, v{V_PA}, s[96:99], s89 offen",
                f"buffer_load_dword v{V_DUM}, v{V_PB}, s[92:95], s90 offen",
                ["s_add_u32 s89, s89, 128", "s_add_u32 s90, s90, 128", "s_add_u32 s91, s91, 1"],
                ["s_cmp_eq_u32 s91, 16", f"s_cselect_b32 s92, s{P_CIM}, s92", f"s_cselect_b32 s93, s{P_CIM+1}, s93", "s_cselect_b32 s90, 0, s90"]]
    def EARLY_B():
        srd(52, P_WS, SZ_G, WS_G)
        e("  s_lshl_b32 s74, s57, 7")
        e("  s_lshl_b32 s77, s87, 6")
        e("  s_add_u32 s74, s74, s77")
        e("  v_add_u32 v32, s74, v3")
        e("  v_lshlrev_b32 v33, 2, v32")
        for mt in range(4):
            e(f"  buffer_load_dword v{40+mt}, v33, s[52:55], 0 offen offset:{mt*64}")
        srd(52, P_DSK, 2048)
        e("  s_lshl_b32 s74, s58, 8")
        e("  s_lshl_b32 s77, s88, 7")
        e("  s_add_u32 s74, s74, s77")
        e("  v_lshl_add_u32 v35, v4, 3, s74")
        for j in range(4):
            e(f"  buffer_load_dwordx2 v[{44+2*j}:{45+2*j}], v35, s[52:55], 0 offen offset:{j*32}")
        e("  v_lshl_add_u32 v36, v32, 11, v35")
        srd(52, P_X, 2048*2048)
        for mt in range(4):
            for j in range(4):
                r = 224 + (mt*4+j)*2
                e(f"  s_mov_b32 s74, {mt*16*2048}")
                e(f"  buffer_load_dwordx2 v[{r}:{r+1}], v36, s[52:55], s74 offen offset:{j*32}")
    def dmaB0():
        f = []
        for j in range(4):
            f.append([f"s_add_u32 s79, s62, s70", f"s_add_u32 m0, s79, {j*1024}"] if j == 0 else [f"s_add_u32 m0, s79, {j*1024}"])
            f.append(f"buffer_load_dwordx4 v{V_DA+j}, s[40:43], s63 offen lds")
        for j in range(2):
            f.append(f"s_add_u32 m0, s79, {16384+j*1024}")
            f.append(f"buffer_load_dwordx4 v{V_DA+j}, s[48:51], s63 offen lds")
        return f
    def dmaB():
        f = []
        for j in range(2, 4):
            f.append(f"s_add_u32 m0, s79, {16384+j*1024}")
            f.append(f"buffer_load_dwordx4 v{V_DA+j}, s[48:51], s63 offen lds")
        for j in range(4):
            f.append(f"s_add_u32 m0, s79, {32768+j*1024}")
            f.append(f"buffer_load_dwordx4 v{V_DW+j}, s[44:47], s64 offen lds")
        f.append(["s_add_u32 s63, s63, 16384", "s_add_u32 s64, s64, 128", "s_add_u32 s65, s65, 1"])
        f.append([f"s_add_u32 s62, s62, {ST}", f"s_cmp_ge_u32 s62, {NB*ST}", "s_cselect_b32 s62, 0, s62"])
        f.append(["s_cmp_eq_u32 s65, 16", f"s_cselect_b32 s44, s{P_CIM}, s44", f"s_cselect_b32 s45, s{P_CIM+1}, s45", "s_cselect_b32 s64, 0, s64"])
        f.append([f"s_cmp_ge_u32 s65, {NST}", "s_cselect_b32 s42, 0, s42", "s_cselect_b32 s46, 0, s46", "s_cselect_b32 s50, 0, s50"])
        return f
    def b_reads(st, u):
        va = V_RA1 if u else V_RA0; vw = V_RW1 if u else V_RW0
        b = FR + st*48
        r = [f"ds_read_b128 {vr(b+32+j*4)}, v{vw} offset:{j*2048}" for j in range(4)]
        r += [f"ds_read_b128 {vr(b+mt*4)}, v{va} offset:{mt*2048}" for mt in range(4)]
        r += [f"ds_read_b128 {vr(b+16+mt*4)}, v{va} offset:{16384+mt*2048}" for mt in range(4)]
        return r
    def b_mfmas(st):
        b = FR + st*48
        m = []
        for hl in range(2):
            for j in range(4):
                for mt in range(4):
                    acc = vr(ACC+(j*4+mt)*4)
                    m.append(f"v_mfma_f32_16x16x32_bf16 {acc}, {vr(b+32+j*4)}, {vr(b+hl*16+mt*4)}, {acc}")
        return m
    def advB():
        return [["s_add_u32 s71, s71, 1", f"s_cmp_ge_u32 s71, {NB}", f"s_mov_b32 s72, {ST}", f"s_cselect_b32 s72, {-(NB-1)*ST & 0xffffffff}, s72", "s_cselect_b32 s71, 0, s71"]] + \
               [f"v_add_u32 v{x}, s72, v{x}" for x in (V_RA0, V_RA1, V_RW0, V_RW1)]
    for s in range(NB-1): flat(dmaB0() + dmaB())
    flat(dmaB0())
    EARLY_B()
    e(f"  s_waitcnt vmcnt({(NB-2)*D + D//2 + 24})")
    e("  s_barrier")
    stamp(1)
    flat(b_reads(0, 0))
    e("  s_mov_b32 s84, 0")
    Ll = Lbl.new("K2_B")
    e(f"{Ll}:")
    e("  s_waitcnt lgkmcnt(0)")
    interleave(b_mfmas(0), mix(b_reads(1, 1), dmaB()), 0.9)
    e(f"  s_waitcnt vmcnt({(NB-2)*D}) lgkmcnt(0)")
    e("  s_barrier")
    interleave(b_mfmas(1), advB() + mix(b_reads(0, 0), dmaB0()), 0.9)
    e("  s_add_u32 s84, s84, 1")
    e(f"  s_cmp_lt_u32 s84, {NST}")
    e(f"  s_cbranch_scc1 {Ll}")
    stamp(2)
    for j in range(4):
        for i in range(4):
            src = 44+2*j+(i >> 1)
            if i & 1: e(f"  v_and_b32 v{192+j*4+i}, 0xffff0000, v{src}")
            else:     e(f"  v_lshlrev_b32 v{192+j*4+i}, 16, v{src}")
    for mt in range(4):
        for j in range(4):
            a = ACC + (j*4+mt)*4; xr = 224 + (mt*4+j)*2
            for i in range(4):
                src = xr + (i >> 1)
                if i & 1: e(f"  v_and_b32 v{52+i}, 0xffff0000, v{src}")
                else:     e(f"  v_lshlrev_b32 v{52+i}, 16, v{src}")
            e(f"  v_pk_mul_f32 v[52:53], v[52:53], v[{192+j*4}:{193+j*4}]")
            e(f"  v_pk_mul_f32 v[54:55], v[54:55], v[{194+j*4}:{195+j*4}]")
            e(f"  v_cvt_pk_bf16_f32 v56, v52, v53")
            e(f"  v_cvt_pk_bf16_f32 v57, v54, v55")
            for i, (src, hi) in enumerate(((56,0),(56,1),(57,0),(57,1))):
                if hi: e(f"  v_and_b32 v{52+i}, 0xffff0000, v{src}")
                else:  e(f"  v_lshlrev_b32 v{52+i}, 16, v{src}")
            for i in range(4): e(f"  v_fma_f32 v{a+i}, 2.0, v{a+i}, v{52+i}")
            for i in range(4): e(f"  v_mul_f32 v{a+i}, v{a+i}, v{40+mt}")
    srd(48, P_DBG, 256)
    srd(52, P_WS, SZ_T, WS_T)
    e("  s_lshr_b32 s74, s60, 1")
    e("  s_lshl_b32 s74, s74, 2")
    e("  s_and_b32 s75, s60, 1")
    e("  s_lshl_b32 s75, 1, s75")
    e("  s_mov_b32 s78, 0")
    e("  v_mov_b32 v37, 0")
    Lp = Lbl.new("K2_poll"); Lg = Lbl.new("K2_got")
    e(f"{Lp}:")
    e("  buffer_load_dword v38, v37, s[48:51], s74 offen sc1")
    e("  s_waitcnt vmcnt(0)")
    e("  v_readfirstlane_b32 s79, v38")
    e("  s_add_u32 s78, s78, 1")
    e("  s_and_b32 s79, s79, s75")
    e(f"  s_cbranch_scc1 {Lg}")
    e("  s_cmp_gt_u32 s78, 0x100000")
    e(f"  s_cbranch_scc1 {Lg}")
    e("  s_sleep 1")
    e(f"  s_branch {Lp}")
    e(f"{Lg}:")
    stamp(3)
    for mt in range(4):
        for j in range(4):
            r = 160 + (mt*4+j)*2
            e(f"  s_mov_b32 s74, {mt*16*2048}")
            e(f"  buffer_load_dwordx2 v[{r}:{r+1}], v36, s[52:55], s74 offen offset:{j*32} sc0 sc1")
    srd(48, P_OUT, 2048*1024*4)
    e("  v_lshlrev_b32 v36, 1, v36")
    for mt in range(4):
        for j in range(4):
            a = ACC + (j*4+mt)*4; tr = 160 + (mt*4+j)*2
            e(f"  s_waitcnt vmcnt({15 - (mt*4+j) + (mt*4+j)})") if False else None
            e(f"  s_waitcnt vmcnt({15})") if (mt*4+j) == 0 else None
            for i in range(4):
                src = tr + (i >> 1)
                if i & 1: e(f"  v_and_b32 v{56+i}, 0xffff0000, v{src}")
                else:     e(f"  v_lshlrev_b32 v{56+i}, 16, v{src}")
            e(f"  v_pk_add_f32 v[{a}:{a+1}], v[{a}:{a+1}], v[56:57]")
            e(f"  v_pk_add_f32 v[{a+2}:{a+3}], v[{a+2}:{a+3}], v[58:59]")
            e(f"  s_mov_b32 s74, {mt*16*4096}")
            e(f"  buffer_store_dwordx4 {vr(a)}, v36, s[48:51], s74 offen offset:{j*64}")
            if (mt*4+j) < 15: e(f"  s_waitcnt vmcnt(15)")
    if PROF: e("  s_waitcnt vmcnt(0)")
    stamp(4)
    stamp_flush(1, 5)
    e(f"{Lend}:")
    e("  s_endpgm")

def desc(name, vgpr, accum):
    e(f".amdhsa_kernel {name}")
    e(f"  .amdhsa_next_free_vgpr {vgpr}")
    e("  .amdhsa_next_free_sgpr 102")
    e(f"  .amdhsa_accum_offset {accum}")
    e("  .amdhsa_group_segment_fixed_size 0")
    e("  .amdhsa_kernarg_size 136")
    e("  .amdhsa_user_sgpr_count 2")
    e("  .amdhsa_user_sgpr_kernarg_segment_ptr 1")
    e("  .amdhsa_system_sgpr_workgroup_id_x 1")
    e(".end_amdhsa_kernel")

def main():
    hdr = open("gated_mix__ssm_conv_s5__glu_gated_swiglu__prompt.s.ref").read().split("\n")
    for l in hdr:
        if l.startswith("; @launch"): break
        e(l)
    e("; @launch kernel=gm_phase1_kernel grid=(256,1,1) block=(256,1,1) lds=139264")
    e("; @launch kernel=gm_phase2_kernel grid=(256,1,1) block=(256,1,1) lds=163840")
    e('.amdgcn_target "amdgcn-amd-amdhsa--gfx950"')
    e(".text")
    kernel1()
    kernel2()
    e('.section .rodata,"a"')
    e(".p2align 6")
    desc("gm_phase1_kernel", 512, 256)
    e(".p2align 6")
    desc("gm_phase2_kernel", 256, 256)
    open(sys.argv[1] if len(sys.argv) > 1 else "gated_mix__ssm_conv_s5__glu_gated_swiglu__prompt.s", "w").write("\n".join(OUT) + "\n")

main()
```

```python
import sys

OUT = []
def e(s=""):
    if OUT and " lds" in s and s.strip().startswith("buffer_load") and " m0," in OUT[-1]:
        OUT.append("  s_nop 0")
    OUT.append(s)

class Lbl:
    n = 0
    @staticmethod
    def new(p="L"):
        Lbl.n += 1
        return f"{p}_{Lbl.n}"

WS_HMID = 0x0;        SZ_HMID = 2048*3584*2
WS_HHI  = 0x1000000;  SZ_H = 2048*2048*2
WS_HLO  = 0x1800000
WS_T    = 0x2000000;  SZ_T = 2048*1024*2
WS_G    = 0x2400000;  SZ_G = 2048*4
WS_AGG  = 0x2410000;  SZ_AGG = 8*512*16

P_X, P_LRE, P_LIM, P_BRE, P_BIM, P_CRE, P_CIM, P_LDT = 4, 6, 8, 10, 12, 14, 16, 18
P_DSK, P_BX, P_W1, P_W3, P_W2, P_GW, P_OUT, P_DBG = 20, 22, 24, 26, 28, 30, 32, 34
P_WS = 36

def srd(d, p, nbytes, off=0):
    if off:
        e(f"  s_add_u32 s{d}, s{p}, 0x{off:x}")
        e(f"  s_addc_u32 s{d+1}, s{p+1}, 0")
    else:
        e(f"  s_mov_b32 s{d}, s{p}")
        e(f"  s_mov_b32 s{d+1}, s{p+1}")
    e(f"  s_mov_b32 s{d+2}, 0x{nbytes:x}")
    e(f"  s_mov_b32 s{d+3}, 0x00020000")

def load_ptrs():
    e("  s_load_dwordx16 s[4:19], s[0:1], 0")
    e("  s_load_dwordx16 s[20:35], s[0:1], 64")
    e("  s_load_dwordx2 s[36:37], s[0:1], 128")

def vr(b, n=4): return f"v[{b}:{b+n-1}]"
def ar(b, n=4): return f"a[{b}:{b+n-1}]"

def interleave(mfmas, fillers, frac=0.8):
    M = len(mfmas); F = len(fillers)
    span = max(1, int(M*frac))
    done = 0
    for i, m in enumerate(mfmas):
        e("  " + m)
        want = min(F, ((i+1)*F + span - 1)//span)
        while done < want:
            f = fillers[done]; done += 1
            if isinstance(f, str): e("  " + f)
            else:
                for x in f: e("  " + x)
    while done < F:
        f = fillers[done]; done += 1
        if isinstance(f, str): e("  " + f)
        else:
            for x in f: e("  " + x)

PROF = len(sys.argv) > 2 and sys.argv[2] == "prof"
import os
EXP = os.environ.get("EXP", "")
WT = os.environ.get("WT", "")
WT2 = os.environ.get("WT2", "")
STAMP = dict(t=14, regs=[16,17,20,21,22,23,28,29,32,33])
def stamp(i):
    if not PROF: return
    t = STAMP["t"]
    e(f"  s_memrealtime s[{t}:{t+1}]" if os.environ.get("RT") else f"  s_memtime s[{t}:{t+1}]")
    e("  s_waitcnt lgkmcnt(0)")
    e(f"  s_mov_b32 s{STAMP['regs'][i]}, s{t}")
def stamp_flush(kid, n):
    if not PROF: return
    srd(48, P_WS, 0x100000, 0x3000000 + kid*0x10000)
    t = STAMP["t"]
    e(f"  s_lshl_b32 s{t}, s2, 8")
    e(f"  s_lshl_b32 s{t+1}, s56, 6")
    e(f"  s_add_u32 s{t}, s{t}, s{t+1}")
    e("  v_mov_b32 v251, 0")
    for i in range(n):
        e(f"  v_mov_b32 v250, s{STAMP['regs'][i]}")
        e(f"  buffer_store_dword v250, v251, s[48:51], s{t} offen offset:{i*4}")
        e("  s_waitcnt vmcnt(0)")

def bf16_round(dst, src, tmp):
    e(f"  v_cvt_pk_bf16_f32 v{tmp}, v{src}, v{src}")
    e(f"  v_lshlrev_b32 v{dst}, 16, v{tmp}")

def mix(reads, dma):
    groups = []
    i = 0
    while i < len(dma):
        f = dma[i]
        txt = f if isinstance(f, str) else " ".join(f)
        if " m0," in txt and i + 1 < len(dma):
            groups.append([dma[i], dma[i+1]]); i += 2
        else:
            groups.append([dma[i]]); i += 1
    out = []
    n = len(reads); g = len(groups)
    gi = 0
    for k, r in enumerate(reads):
        out.append(r)
        want = ((k+1)*g)//n
        while gi < want:
            out += groups[gi]; gi += 1
    while gi < g:
        out += groups[gi]; gi += 1
    return out

def flat(fl):
    for f in fl:
        if isinstance(f, str): e("  " + f)
        else:
            for x in f: e("  " + x)

def kernel1():
    K = "gm_phase1_kernel"
    e(f".globl {K}\n.p2align 8\n.type {K},@function\n{K}:")
    Lend = "K1_end"
    e("  s_cmp_ge_u32 s2, 256")
    e(f"  s_cbranch_scc1 {Lend}")
    load_ptrs()
    e("  v_and_b32 v1, 63, v0")
    e("  v_lshrrev_b32 v2, 6, v0")
    e("  s_nop 0")
    e("  v_readfirstlane_b32 s56, v2")
    e("  v_and_b32 v3, 15, v1")
    e("  v_lshrrev_b32 v4, 4, v1")
    e("  s_lshr_b32 s57, s2, 3")
    e("  s_and_b32 s57, s57, 7")
    e("  s_and_b32 s58, s2, 7")
    e("  s_lshl_b32 s58, s58, 2")
    e("  s_lshr_b32 s59, s2, 6")
    e("  s_add_u32 s58, s58, s59")
    NBUF = 4; STG = 34816; D = 9
    OFF_W = 16384; OFF_S = 30720
    V_DA = 8
    V_DW = 12
    V_DS = 16
    V_RA = 17; V_RW = 18; V_RS = 19
    AFR = 32
    SACC = 64
    GACC = 128
    UACC = 0
    FR = 112
    TMP = 20
    e("  s_lshl_b32 s73, s57, 19")
    for j in range(4):
        e(f"  s_lshl_b32 s74, s56, 8")
        e(f"  s_add_u32 s74, s74, {j*64}")
        e(f"  v_add_u32 v20, s74, v1")
        e(f"  v_lshrrev_b32 v21, 2, v20")
        e(f"  v_and_b32 v22, 3, v20")
        e(f"  v_bfe_u32 v23, v21, 3, 1")
        e(f"  v_mul_u32_u24 v23, 3, v23")
        e(f"  v_xor_b32 v22, v22, v23")
        e(f"  v_lshlrev_b32 v21, 11, v21")
        e(f"  v_lshl_add_u32 v21, v22, 4, v21")
        e(f"  v_add_u32 v{V_DA+j}, s73, v21")
    e("  s_mul_i32 s75, s58, 224")
    e("  s_and_b32 s76, s56, 1")
    e("  s_lshl_b32 s76, s76, 2")
    e("  s_lshr_b32 s77, s56, 1")
    e("  s_mul_i32 s77, s77, 7168")
    e(f"  s_add_u32 s77, s77, {OFF_W}")
    for j in range(4):
        e(f"  s_add_u32 s74, s76, {j}")
        e(f"  s_min_u32 s74, s74, 6")
        e(f"  s_lshl_b32 s78, s74, 10")
        e(f"  s_add_u32 s{66+j}, s78, s77")
        e(f"  s_lshl_b32 s74, s74, 6")
        e(f"  v_add_u32 v20, s74, v1")
        e(f"  v_mul_u32_u24 v21, 4682, v20")
        e(f"  v_lshrrev_b32 v21, 16, v21")
        e(f"  v_mul_u32_u24 v22, 14, v21")
        e(f"  v_sub_u32 v22, v20, v22")
        e(f"  v_and_b32 v23, 0x13, v21")
        e(f"  v_bfe_u32 v24, v21, 2, 1")
        e(f"  v_lshl_or_b32 v23, v24, 3, v23")
        e(f"  v_bfe_u32 v24, v21, 3, 1")
        e(f"  v_lshl_or_b32 v23, v24, 2, v23")
        e(f"  v_mul_u32_u24 v23, 7168, v23")
        e(f"  v_lshl_add_u32 v23, v22, 4, v23")
        e(f"  v_add_u32 v{V_DW+j}, s75, v23")
    e("  s_lshl_b32 s74, s56, 6")
    e("  v_add_u32 v20, s74, v1")
    e("  v_lshrrev_b32 v21, 2, v20")
    e("  v_and_b32 v22, 3, v20")
    e("  v_bfe_u32 v23, v21, 3, 1")
    e("  v_mul_u32_u24 v23, 3, v23")
    e("  v_xor_b32 v22, v22, v23")
    e("  v_and_b32 v21, 31, v21")
    e("  v_lshlrev_b32 v21, 11, v21")
    e("  v_lshl_add_u32 v21, v22, 4, v21")
    e("  s_lshl_b32 s74, s58, 16")
    e(f"  v_add_u32 v{V_DS}, s74, v21")
    e("  s_lshl_b32 s70, s56, 12")
    e("  s_lshl_b32 s80, s56, 10")
    e(f"  s_add_u32 s80, s80, {OFF_S}")
    e("  v_bfe_u32 v20, v1, 3, 1")
    e("  v_mul_u32_u24 v20, 3, v20")
    e("  v_xor_b32 v20, v20, v4")
    e("  v_lshlrev_b32 v20, 4, v20")
    e("  v_lshl_add_u32 v20, v3, 6, v20")
    e(f"  v_add_u32 v{V_RA}, s70, v20")
    e(f"  v_add_u32 v{V_RS}, {OFF_S}, v20")
    e("  v_bfe_u32 v20, v1, 5, 1")
    e("  v_lshlrev_b32 v20, 4, v20")
    e("  v_bfe_u32 v21, v1, 4, 1")
    e("  v_lshl_add_u32 v20, v21, 2, v20")
    e("  v_bfe_u32 v21, v1, 2, 2")
    e("  v_add_u32 v20, v20, v21")
    e("  v_mul_u32_u24 v20, 224, v20")
    e("  v_and_b32 v21, 3, v1")
    e("  v_lshl_add_u32 v20, v21, 3, v20")
    e(f"  v_add_u32 v{V_RW}, {OFF_W}, v20")
    for r in (62, 63, 64, 65, 71): e(f"  s_mov_b32 s{r}, 0")
    e("  s_waitcnt lgkmcnt(0)")
    stamp(0)
    srd(40, P_X, 2048*2048)
    e("  s_cmp_lt_u32 s56, 2")
    e(f"  s_cselect_b32 s44, s{P_W1}, s{P_W3}")
    e(f"  s_cselect_b32 s45, s{P_W1+1}, s{P_W3+1}")
    e(f"  s_mov_b32 s46, 0x{1024*7168:x}")
    e("  s_mov_b32 s47, 0x00020000")
    e(f"  s_cselect_b32 s96, s{P_BRE}, s{P_BIM}")
    e(f"  s_cselect_b32 s97, s{P_BRE+1}, s{P_BIM+1}")
    e(f"  s_mov_b32 s98, 0x{1024*2048:x}")
    e("  s_mov_b32 s99, 0x00020000")

    def dma_stage():
        f = []
        for j in range(4):
            f.append([f"s_add_u32 s79, s62, s70", f"s_add_u32 m0, s79, {j*1024}"] if j == 0 else [f"s_add_u32 m0, s79, {j*1024}"])
            f.append(f"buffer_load_dwordx4 v{V_DA+j}, s[40:43], s63 offen lds")
        for j in range(4):
            f.append(f"s_add_u32 m0, s62, s{66+j}")
            f.append(f"buffer_load_dwordx4 v{V_DW+j}, s[44:47], s64 offen lds")
        f.append(f"s_add_u32 m0, s62, s80")
        f.append(f"buffer_load_dwordx4 v{V_DS}, s[96:99], s63 offen lds")
        f.append(["s_add_u32 s63, s63, 64", f"s_add_u32 s64, s64, {32*7168}", "s_add_u32 s65, s65, 1"])
        f.append([f"s_add_u32 s62, s62, {STG}", f"s_cmp_ge_u32 s62, {NBUF*STG}", "s_cselect_b32 s62, 0, s62"])
        f.append(["s_cmp_ge_u32 s65, 32", "s_cselect_b32 s42, 0, s42", "s_cselect_b32 s46, 0, s46", "s_cselect_b32 s98, 0, s98"])
        return f
    flat(dma_stage())
    srd(48, P_GW, 2048)
    e("  s_lshl_b32 s60, s2, 3")
    e("  s_lshl_b32 s61, s56, 1")
    e("  s_add_u32 s60, s60, s61")
    e("  s_lshl_b32 s61, s60, 11")
    e("  v_lshlrev_b32 v5, 5, v1")
    e("  buffer_load_dwordx4 v[20:23], v5, s[48:51], 0 offen")
    e("  buffer_load_dwordx4 v[24:27], v5, s[48:51], 0 offen offset:16")
    e("  buffer_load_dwordx4 v[240:243], v5, s[40:43], s61 offen")
    e("  buffer_load_dwordx4 v[244:247], v5, s[40:43], s61 offen offset:16")
    e("  buffer_load_dwordx4 v[248:251], v5, s[40:43], s61 offen offset:2048")
    e("  buffer_load_dwordx4 v[252:255], v5, s[40:43], s61 offen offset:2064")
    e("  s_lshl_b32 s74, s58, 6")
    e("  v_lshl_add_u32 v28, v3, 2, s74")
    srd(48, P_LRE, 2048)
    e("  buffer_load_dword v29, v28, s[48:51], 0 offen")
    srd(48, P_LIM, 2048)
    e("  buffer_load_dword v30, v28, s[48:51], 0 offen")
    srd(48, P_LDT, 2048)
    e("  buffer_load_dword v31, v28, s[48:51], 0 offen")
    zer = []
    for i in range(112):
        zer.append(f"v_mov_b32 v{GACC+i}, 0")
        zer.append(f"v_accvgpr_write_b32 a{UACC+i}, 0")
    for i in range(64): zer.append(f"v_mov_b32 v{SACC+i}, 0")
    dl = []
    for s_ in range(NBUF-1): dl += dma_stage()
    interleave(zer, dl, 1.0)

    def g_compute():
        for row in range(2):
            e(f"  v_mov_b32 v{28+row}, 0")
            for d in range(8):
                xv = 240 + row*8 + d; gv = 20 + d
                e(f"  v_lshlrev_b32 v32, 16, v{xv}")
                e(f"  v_lshlrev_b32 v33, 16, v{gv}")
                e(f"  v_and_b32 v34, 0xffff0000, v{xv}")
                e(f"  v_and_b32 v35, 0xffff0000, v{gv}")
                e(f"  v_pk_mul_f32 v[32:33], v[32:33], v[32:33] op_sel:[0,1] op_sel_hi:[0,1]") if False else None
                e(f"  v_mul_f32 v32, v32, v33")
                e(f"  v_mul_f32 v34, v34, v35")
                e(f"  v_cvt_pk_bf16_f32 v32, v32, v34")
                e(f"  v_lshlrev_b32 v33, 16, v32")
                e(f"  v_and_b32 v34, 0xffff0000, v32")
                e(f"  v_add_f32 v{28+row}, v{28+row}, v33")
                e(f"  v_add_f32 v{28+row}, v{28+row}, v34")
        for off in (0x041F, 0x081F, 0x101F, 0x201F, 0x401F):
            e(f"  ds_swizzle_b32 v30, v28 offset:0x{off:04X}")
            e(f"  ds_swizzle_b32 v31, v29 offset:0x{off:04X}")
            e("  s_waitcnt lgkmcnt(0)")
            e("  v_add_f32 v28, v28, v30")
            e("  v_add_f32 v29, v29, v31")
        e("  s_nop 1")
        e("  v_readlane_b32 s81, v28, 32")
        e("  v_readlane_b32 s82, v29, 32")
        e("  s_nop 1")
        e("  v_add_f32 v28, s81, v28")
        e("  v_add_f32 v29, s82, v29")
        srd(48, P_WS, SZ_G, WS_G)
        for row in range(2):
            v = 28 + row
            bf16_round(v, v, 32)
            e(f"  v_mul_f32 v33, 0xbfb8aa3b, v{v}")
            e(f"  v_exp_f32 v33, v33")
            e("  s_nop 0")
            e(f"  v_add_f32 v33, 1.0, v33")
            e(f"  v_rcp_f32 v33, v33")
            e("  s_nop 0")
            bf16_round(v, 33, 32)
        e("  s_lshl_b32 s61, s60, 2")
        e("  v_mov_b32 v33, 0")
        e("  s_mov_b64 s[82:83], exec")
        e("  s_mov_b64 exec, 1")
        e("  buffer_store_dword v28, v33, s[48:51], s61 offen")
        e("  buffer_store_dword v29, v33, s[48:51], s61 offen offset:4")
        e("  s_mov_b64 exec, s[82:83]")

    def f_act(st, mt): return AFR + st*16 + mt*4
    def f_w(st, nt): return FR + st*72 + nt*4
    def reads(st):
        r = []
        for mt in range(4):
            r.append(f"ds_read_b128 {vr(f_act(st,mt))}, v{V_RA} offset:{mt*1024}")
        for nt in range(14):
            base = (nt % 7)*32 + (7168 if nt >= 7 else 0)
            b = f_w(st, nt)
            r.append(f"ds_read_b64_tr_b16 {ar(b,2)}, v{V_RW} offset:{base}")
            r.append(f"ds_read_b64_tr_b16 {ar(b+2,2)}, v{V_RW} offset:{base+8*224}")
        for q in range(4):
            r.append(f"ds_read_b128 {ar(f_w(st,14+q))}, v{V_RS} offset:{q*1024}")
        return r
    def mfmas(st):
        m = []
        for nt in range(18):
            for mt in range(4):
                if nt < 7: acc = vr(GACC + (nt*4+mt)*4)
                elif nt < 14: acc = ar(UACC + ((nt-7)*4+mt)*4)
                else: acc = vr(SACC + ((nt-14)*4+mt)*4)
                m.append(f"v_mfma_f32_16x16x32_bf16 {acc}, {ar(f_w(st,nt))}, {vr(f_act(st,mt))}, {acc}")
        return m
    def adv_read():
        return [["s_add_u32 s71, s71, 1", f"s_cmp_ge_u32 s71, {NBUF}", f"s_mov_b32 s72, {STG}", f"s_cselect_b32 s72, {-(NBUF-1)*STG & 0xffffffff}, s72", "s_cselect_b32 s71, 0, s71"],
                f"v_add_u32 v{V_RA}, s72, v{V_RA}", f"v_add_u32 v{V_RW}, s72, v{V_RW}", f"v_add_u32 v{V_RS}, s72, v{V_RS}"]
    e(f"  s_waitcnt vmcnt({(NBUF-1)*D + 9})")
    e("  s_barrier")
    stamp(1)
    flat(reads(0))
    e("  s_mov_b32 s84, 0")
    Lloop = Lbl.new("K1_main")
    e(f"{Lloop}:")
    for half in range(2):
        e(f"  s_waitcnt vmcnt({(NBUF-2)*D}) lgkmcnt(0)")
        if "nobar" not in EXP: e("  s_barrier")
        fl = adv_read() + mix(reads(1-half), dma_stage())
        interleave(mfmas(half), fl, 0.95)
    e("  s_add_u32 s84, s84, 1")
    e("  s_cmp_lt_u32 s84, 16")
    e(f"  s_cbranch_scc1 {Lloop}")
    e("  s_waitcnt vmcnt(0) lgkmcnt(0)")
    e("  s_barrier")
    stamp(2)
    e("  v_mov_b32 v36, v29\n  v_mov_b32 v37, v30\n  v_mov_b32 v38, v31")
    g_compute()

    UST = 272; EOFF = 69632
    e("  s_lshl_b32 s74, s56, 6")
    e("  v_add_u32 v20, s74, v3")
    e(f"  v_mul_u32_u24 v20, {UST}, v20")
    e("  v_lshl_add_u32 v20, v4, 4, v20")
    for p in range(2):
        for j in range(2):
            for mt in range(4):
                e(f"  ds_write_b128 v20, {vr(SACC + p*32 + (j*4+mt)*4)} offset:{mt*16*UST + j*64 + p*128}")
    e("  s_lshl_b32 s74, s56, 2")
    e("  v_add_u32 v34, s74, v4")
    e("  s_lshl_b32 s74, s58, 6")
    e("  v_lshl_add_u32 v35, v3, 2, s74")
    e("  s_waitcnt lgkmcnt(0)")
    e("  s_barrier")
    e(f"  v_lshlrev_b32 v62, 4, v34")
    e(f"  v_mul_u32_u24 v62, {UST}, v62")
    e("  v_lshl_add_u32 v62, v3, 3, v62")
    def u_reads():
        for i in range(16):
            e(f"  ds_read_b64 v[{64+4*i}:{65+4*i}], v62 offset:{i*UST}")
            e(f"  ds_read_b64 v[{66+4*i}:{67+4*i}], v62 offset:{i*UST+128}")
    u_reads()
    for (src, dst) in ((36, 40), (37, 42), (38, 44)):
        e(f"  v_lshlrev_b32 v{dst}, 16, v{src}")
        e(f"  v_and_b32 v{dst+1}, 0xffff0000, v{src}")
    for c in range(2):
        e(f"  v_mul_f32 v{44+c}, 0x3fb8aa3b, v{44+c}")
        e(f"  v_exp_f32 v{44+c}, v{44+c}")
        e("  s_nop 0")
        bf16_round(44+c, 44+c, 32)
        e(f"  v_mul_f32 v46, v{44+c}, v{40+c}")
        e(f"  v_mul_f32 v47, v{44+c}, v{42+c}")
        e(f"  v_mul_f32 v46, 0x3fb8aa3b, v46")
        e(f"  v_exp_f32 v46, v46")
        e(f"  v_mul_f32 v47, 0.15915494, v47")
        e(f"  v_fract_f32 v47, v47")
        e(f"  v_cos_f32 v48, v47")
        e(f"  v_sin_f32 v49, v47")
        e("  s_nop 0")
        e(f"  v_mul_f32 v{50+c}, v46, v48")
        e(f"  v_mul_f32 v{52+c}, v46, v49")
        e(f"  v_mul_f32 v46, v{40+c}, v{40+c}")
        e(f"  v_fmac_f32 v46, v{42+c}, v{42+c}")
        e(f"  v_rcp_f32 v46, v46")
        e(f"  v_add_f32 v47, -1.0, v{50+c}")
        e(f"  v_mul_f32 v48, v47, v{40+c}")
        e(f"  v_fmac_f32 v48, v{52+c}, v{42+c}")
        e(f"  v_mul_f32 v49, v{52+c}, v{40+c}")
        e(f"  v_fma_f32 v49, -v47, v{42+c}, v49")
        e(f"  v_mul_f32 v{54+c}, v48, v46")
        e(f"  v_mul_f32 v{56+c}, v49, v46")
    for c in range(2):
        e(f"  v_xor_b32 v{58+c}, 0x80000000, v{52+c}")
        e(f"  v_xor_b32 v{60+c}, 0x80000000, v{56+c}")
    def cmul(dr, di, ar_, ai, br, bi, nbi, tr):
        e(f"  v_pk_mul_f32 v[{tr}:{tr+1}], v[{ar_}:{ar_+1}], v[{br}:{br+1}]")
        e(f"  v_pk_mul_f32 v[{tr+2}:{tr+3}], v[{ai}:{ai+1}], v[{br}:{br+1}]")
        e(f"  v_pk_fma_f32 v[{tr}:{tr+1}], v[{ai}:{ai+1}], v[{nbi}:{nbi+1}], v[{tr}:{tr+1}]")
        e(f"  v_pk_fma_f32 v[{tr+2}:{tr+3}], v[{ar_}:{ar_+1}], v[{bi}:{bi+1}], v[{tr+2}:{tr+3}]")
        e(f"  v_mov_b32 v{dr}, v{tr}\n  v_mov_b32 v{dr+1}, v{tr+1}\n  v_mov_b32 v{di}, v{tr+2}\n  v_mov_b32 v{di+1}, v{tr+3}")
    def cneg(d, s):
        e(f"  v_xor_b32 v{d}, 0x80000000, v{s}\n  v_xor_b32 v{d+1}, 0x80000000, v{s+1}")
    for k in range(2):
        e(f"  v_mov_b32 v{8+k}, v{50+k}\n  v_mov_b32 v{10+k}, v{52+k}")
    for it in range(4):
        cneg(12, 10); cmul(8, 10, 8, 10, 8, 10, 12, 20)
    cneg(12, 10)
    for k in range(2):
        e(f"  v_mov_b32 v{14+k}, v{8+k}\n  v_mov_b32 v{16+k}, v{10+k}")
    for it in range(4):
        cneg(18, 16); cmul(14, 16, 14, 16, 14, 16, 18, 20)
    cneg(18, 16)
    e("  s_waitcnt lgkmcnt(0)")
    for k in range(4): e(f"  v_mov_b32 v{24+k}, 0")
    def hstep(bur, bui):
        e(f"  v_pk_fma_f32 v[20:21], v[24:25], v[50:51], v[{bur}:{bur+1}]")
        e(f"  v_pk_fma_f32 v[22:23], v[26:27], v[50:51], v[{bui}:{bui+1}]")
        e(f"  v_pk_fma_f32 v[20:21], v[26:27], v[58:59], v[20:21]")
        e(f"  v_pk_fma_f32 v[26:27], v[24:25], v[52:53], v[22:23]")
        e(f"  v_mov_b32 v24, v20\n  v_mov_b32 v25, v21")
    for i in range(16):
        ur = 64+4*i; ui = 66+4*i
        e(f"  v_pk_mul_f32 v[28:29], v[{ur}:{ur+1}], v[54:55]")
        e(f"  v_pk_mul_f32 v[30:31], v[{ui}:{ui+1}], v[54:55]")
        e(f"  v_pk_fma_f32 v[28:29], v[{ui}:{ui+1}], v[60:61], v[28:29]")
        e(f"  v_pk_fma_f32 v[{ui}:{ui+1}], v[{ur}:{ur+1}], v[56:57], v[30:31]")
        e(f"  v_mov_b32 v{ur}, v28\n  v_mov_b32 v{ur+1}, v29")
        e(f"  ds_write_b64 v62, v[{ur}:{ur+1}] offset:{i*UST}")
        e(f"  ds_write_b64 v62, v[{ui}:{ui+1}] offset:{i*UST+128}")
        hstep(ur, ui)
    e("  v_lshlrev_b32 v39, 8, v34")
    e("  v_lshl_add_u32 v39, v3, 4, v39")
    e(f"  v_add_u32 v39, {EOFF}, v39")
    e(f"  ds_write_b128 v39, v[24:27]")
    e("  s_waitcnt lgkmcnt(0)")
    e("  s_barrier")
    e("  v_lshlrev_b32 v63, 4, v3")
    e(f"  v_add_u32 v63, {EOFF}, v63")
    def seg_reads():
        for i in range(16):
            e(f"  ds_read_b128 v[{64+4*i}:{67+4*i}], v63 offset:{i*256}")
        e("  s_waitcnt lgkmcnt(0)")
    seg_reads()
    def horner(init_zero):
        if init_zero:
            for k in range(4): e(f"  v_mov_b32 v{24+k}, 0")
        for i in range(16):
            if not init_zero:
                e(f"  v_cmp_eq_u32 vcc, {i}, v34")
                e("  s_nop 1")
                for k in range(4): e(f"  v_cndmask_b32 v{28+k}, v{28+k}, v{24+k}, vcc")
            er = 64+4*i
            e(f"  v_pk_fma_f32 v[20:21], v[24:25], v[8:9], v[{er}:{er+1}]")
            e(f"  v_pk_fma_f32 v[22:23], v[26:27], v[8:9], v[{er+2}:{er+3}]")
            e(f"  v_pk_fma_f32 v[20:21], v[26:27], v[12:13], v[20:21]")
            e(f"  v_pk_fma_f32 v[26:27], v[24:25], v[10:11], v[22:23]")
            e(f"  v_mov_b32 v24, v20\n  v_mov_b32 v25, v21")
    horner(True)
    srd(40, P_WS, SZ_AGG, WS_AGG)
    srd(44, P_DBG, 256)
    e("  s_lshl_b32 s74, s58, 8")
    e("  v_lshl_add_u32 v39, v3, 4, s74")
    e("  s_lshl_b32 s75, s57, 13")
    e("  s_lshl_b32 s76, s58, 2")
    Lnp = Lbl.new("K1_nopub")
    e("  s_cmp_lg_u32 s56, 0")
    e(f"  s_cbranch_scc1 {Lnp}")
    e("  s_mov_b64 s[82:83], exec")
    e("  s_mov_b64 exec, 0xffff")
    e("  buffer_store_dwordx4 v[24:27], v39, s[40:43], s75 offen sc1")
    e("  s_waitcnt vmcnt(0)")
    e("  s_mov_b64 exec, 1")
    e("  s_lshl_b32 s77, 1, s57")
    e("  v_mov_b32 v20, s77")
    e("  v_mov_b32 v21, 0")
    e("  buffer_atomic_or v20, v21, s[44:47], s76 offen sc1")
    e("  s_mov_b64 exec, s[82:83]")
    e(f"{Lnp}:")
    stamp(3)

    T = 64
    srd(48, P_WS, SZ_HMID, WS_HMID)
    e("  s_lshl_b32 s74, s57, 1")
    e("  s_lshr_b32 s77, s56, 1")
    e("  s_add_u32 s74, s74, s77")
    e(f"  s_mul_i32 s74, s74, {56*16384}")
    e("  s_and_b32 s77, s56, 1")
    e("  s_lshl_b32 s77, s77, 13")
    e("  s_add_u32 s74, s74, s77")
    e(f"  v_lshlrev_b32 v{T}, 7, v3")
    e(f"  v_lshl_add_u32 v{T}, v4, 3, v{T}")
    e(f"  v_add_u32 v98, s74, v{T}")
    e("  s_mul_i32 s77, s58, 112")
    for nt in range(7):
        e(f"  s_add_u32 s78, s77, {nt*16}")
        e(f"  s_lshr_b32 s79, s78, 6")
        e(f"  s_lshl_b32 s79, s79, 14")
        e(f"  s_and_b32 s78, s78, 63")
        e(f"  s_lshl_b32 s78, s78, 1")
        e(f"  s_add_u32 s{62+nt}, s79, s78")
    e("  s_mov_b32 s74, 0xbfb8aa3b")
    e("  s_mov_b32 s75, 0xbfb8aa3b")
    e("  s_mov_b32 s78, 1.0")
    e("  s_mov_b32 s79, 1.0")
    def unpk(dst, srcs):
        for i, (src, hi) in enumerate(srcs):
            if hi: e(f"  v_and_b32 v{dst+i}, 0xffff0000, v{src}")
            else:  e(f"  v_lshlrev_b32 v{dst+i}, 16, v{src}")
    for mt in range(4):
        if mt: e(f"  v_add_u32 v98, {16*128}, v98")
        for nt in range(7):
            g = GACC + (nt*4+mt)*4; u = UACC + (nt*4+mt)*4
            e(f"  v_cvt_pk_bf16_f32 v{T}, v{g}, v{g+1}")
            e(f"  v_cvt_pk_bf16_f32 v{T+1}, v{g+2}, v{g+3}")
            unpk(T+2, ((T,0),(T,1),(T+1,0),(T+1,1)))
            e(f"  v_pk_mul_f32 v[{T+6}:{T+7}], v[{T+2}:{T+3}], s[74:75]")
            e(f"  v_pk_mul_f32 v[{T+8}:{T+9}], v[{T+4}:{T+5}], s[74:75]")
            for i in range(4): e(f"  v_exp_f32 v{T+6+i}, v{T+6+i}")
            for i in range(4): e(f"  v_accvgpr_read_b32 v{T+14+i}, a{u+i}")
            e(f"  v_pk_add_f32 v[{T+6}:{T+7}], v[{T+6}:{T+7}], s[78:79]")
            e(f"  v_pk_add_f32 v[{T+8}:{T+9}], v[{T+8}:{T+9}], s[78:79]")
            for i in range(4): e(f"  v_rcp_f32 v{T+6+i}, v{T+6+i}")
            e(f"  v_cvt_pk_bf16_f32 v{T+12}, v{T+14}, v{T+15}")
            e(f"  v_cvt_pk_bf16_f32 v{T+13}, v{T+16}, v{T+17}")
            e(f"  v_pk_mul_f32 v[{T+6}:{T+7}], v[{T+2}:{T+3}], v[{T+6}:{T+7}]")
            e(f"  v_pk_mul_f32 v[{T+8}:{T+9}], v[{T+4}:{T+5}], v[{T+8}:{T+9}]")
            e(f"  v_cvt_pk_bf16_f32 v{T+10}, v{T+6}, v{T+7}")
            e(f"  v_cvt_pk_bf16_f32 v{T+11}, v{T+8}, v{T+9}")
            unpk(T+2, ((T+10,0),(T+10,1),(T+11,0),(T+11,1)))
            unpk(T+6, ((T+12,0),(T+12,1),(T+13,0),(T+13,1)))
            e(f"  v_pk_mul_f32 v[{T+2}:{T+3}], v[{T+2}:{T+3}], v[{T+6}:{T+7}]")
            e(f"  v_pk_mul_f32 v[{T+4}:{T+5}], v[{T+4}:{T+5}], v[{T+8}:{T+9}]")
            t = 90 + ((mt*7+nt) % 4)*2
            e(f"  v_cvt_pk_bf16_f32 v{t}, v{T+2}, v{T+3}")
            e(f"  v_cvt_pk_bf16_f32 v{t+1}, v{T+4}, v{T+5}")
            e(f"  buffer_store_dwordx2 {vr(t,2)}, v98, s[48:51], s{62+nt} offen{WT}")
    stamp(4)

    for k in range(4): e(f"  v_mov_b32 v{24+k}, 0")
    Lnw = Lbl.new("K1_nowait"); Lpoll = Lbl.new("K1_poll"); Lgot = Lbl.new("K1_got")
    e("  s_cmp_eq_u32 s57, 0")
    e(f"  s_cbranch_scc1 {Lnw}")
    e("  s_lshl_b32 s77, 1, s57")
    e("  s_sub_u32 s77, s77, 1")
    e("  s_mov_b32 s78, 0")
    e("  v_mov_b32 v21, 0")
    e(f"{Lpoll}:")
    e("  buffer_load_dword v20, v21, s[44:47], s76 offen sc1")
    e("  s_waitcnt vmcnt(0)")
    e("  v_readfirstlane_b32 s79, v20")
    e("  s_add_u32 s78, s78, 1")
    e("  s_and_b32 s79, s79, s77")
    e("  s_cmp_eq_u32 s79, s77")
    e(f"  s_cbranch_scc1 {Lgot}")
    e("  s_cmp_gt_u32 s78, 0x100000")
    e(f"  s_cbranch_scc1 {Lgot}")
    e("  s_sleep 2")
    e(f"  s_branch {Lpoll}")
    e(f"{Lgot}:")
    Lld = Lbl.new("K1_aggld")
    for i in range(7):
        if i:
            e(f"  s_cmp_le_u32 s57, {i}")
            e(f"  s_cbranch_scc1 {Lld}")
        e(f"  s_mov_b32 s77, {i*8192}")
        e(f"  buffer_load_dwordx4 v[{64+4*i}:{67+4*i}], v39, s[40:43], s77 offen sc1")
    e(f"{Lld}:")
    e("  s_waitcnt vmcnt(0)")
    for i in range(7):
        if i:
            e(f"  s_cmp_le_u32 s57, {i}")
            e(f"  s_cbranch_scc1 {Lnw}")
        er = 64+4*i
        e(f"  v_pk_fma_f32 v[20:21], v[24:25], v[14:15], v[{er}:{er+1}]")
        e(f"  v_pk_fma_f32 v[22:23], v[26:27], v[14:15], v[{er+2}:{er+3}]")
        e(f"  v_pk_fma_f32 v[20:21], v[26:27], v[18:19], v[20:21]")
        e(f"  v_pk_fma_f32 v[26:27], v[24:25], v[16:17], v[22:23]")
        e(f"  v_mov_b32 v24, v20\n  v_mov_b32 v25, v21")
    e(f"{Lnw}:")
    stamp(5)
    seg_reads()
    horner(False)
    u_reads()
    for k in range(4): e(f"  v_mov_b32 v{24+k}, v{28+k}")
    srd(48, P_WS, SZ_H, WS_HHI)
    srd(52, P_WS, SZ_H, WS_HLO)
    e("  s_lshl_b32 s74, s57, 20")
    e("  s_lshr_b32 s77, s58, 1")
    e("  s_lshl_b32 s77, s77, 14")
    e("  s_add_u32 s74, s74, s77")
    e("  s_and_b32 s77, s58, 1")
    e("  s_lshl_b32 s77, s77, 6")
    e("  s_add_u32 s74, s74, s77")
    e("  v_lshrrev_b32 v39, 3, v34")
    e("  v_lshlrev_b32 v39, 19, v39")
    e("  v_and_b32 v28, 7, v34")
    e("  v_lshl_add_u32 v39, v28, 11, v39")
    e("  v_lshl_add_u32 v39, v3, 2, v39")
    e("  v_add_u32 v39, s74, v39")
    e("  s_waitcnt lgkmcnt(0)")
    for i in range(16):
        hstep(64+4*i, 66+4*i)
        o = 240 + (i % 4)*4
        e(f"  v_cvt_pk_bf16_f32 v{o}, v24, v25")
        e(f"  v_cvt_pk_bf16_f32 v{o+2}, -v26, -v27")
        e(f"  v_lshlrev_b32 v28, 16, v{o}")
        e(f"  v_and_b32 v29, 0xffff0000, v{o}")
        e(f"  v_lshlrev_b32 v30, 16, v{o+2}")
        e(f"  v_and_b32 v31, 0xffff0000, v{o+2}")
        e(f"  v_sub_f32 v28, v24, v28")
        e(f"  v_sub_f32 v29, v25, v29")
        e(f"  v_sub_f32_e64 v30, -v26, v30")
        e(f"  v_sub_f32_e64 v31, -v27, v31")
        e(f"  v_cvt_pk_bf16_f32 v{o+1}, v28, v29")
        e(f"  v_cvt_pk_bf16_f32 v{o+3}, v30, v31")
        e(f"  s_mov_b32 s74, 262144")
        e(f"  buffer_store_dword v{o}, v39, s[48:51], 0 offen offset:{i*128}{WT}")
        e(f"  buffer_store_dword v{o+2}, v39, s[48:51], s74 offen offset:{i*128}{WT}")
        e(f"  buffer_store_dword v{o+1}, v39, s[52:55], 0 offen offset:{i*128}{WT}")
        e(f"  buffer_store_dword v{o+3}, v39, s[52:55], s74 offen offset:{i*128}{WT}")
    if PROF: e("  s_waitcnt vmcnt(0)")
    stamp(6)
    stamp_flush(0, 7)
    e(f"{Lend}:")
    e("  s_endpgm")

def kernel2():
    K = "gm_phase2_kernel"
    STAMP["t"] = 6; STAMP["regs"] = [8,9,10,11,12,13,18,19]
    e(f".globl {K}\n.p2align 8\n.type {K},@function\n{K}:")
    Lend = "K2_end"; LB = "K2_typeB"
    e("  s_cmp_ge_u32 s2, 256")
    e(f"  s_cbranch_scc1 {Lend}")
    load_ptrs()
    e("  v_and_b32 v1, 63, v0")
    e("  v_lshrrev_b32 v2, 6, v0")
    e("  s_nop 0")
    e("  v_readfirstlane_b32 s56, v2")
    e("  v_and_b32 v3, 15, v1")
    e("  v_lshrrev_b32 v4, 4, v1")
    e("  s_and_b32 s61, s2, 3")
    e("  s_lshr_b32 s62, s2, 3")
    e("  s_lshl_b32 s57, s61, 2")
    e("  s_lshr_b32 s63, s62, 3")
    e("  s_add_u32 s57, s57, s63")
    e("  s_and_b32 s58, s62, 7")
    e("  s_lshl_b32 s60, s57, 3")
    e("  s_add_u32 s60, s60, s58")
    e("  s_lshr_b32 s87, s56, 1")
    e("  s_and_b32 s88, s56, 1")
    e("  s_lshl_b32 s70, s56, 12")
    e("  s_waitcnt lgkmcnt(0)")
    stamp(0)
    V_RA0, V_RA1 = 20, 21
    e("  v_and_b32 v32, 7, v1")
    e("  v_xor_b32 v32, v32, v4")
    e("  v_lshlrev_b32 v32, 4, v32")
    e("  v_lshl_add_u32 v32, v3, 7, v32")
    e("  s_lshl_b32 s74, s87, 13")
    e(f"  v_add_u32 v{V_RA0}, s74, v32")
    e(f"  v_xor_b32 v{V_RA1}, 64, v{V_RA0}")
    e("  v_mov_b32 v31, v32")
    ACC = 64; FR = 128
    for i in range(64): e(f"  v_mov_b32 v{ACC+i}, 0")
    e("  s_mov_b32 s62, 0\n  s_mov_b32 s63, 0\n  s_mov_b32 s64, 0\n  s_mov_b32 s65, 0\n  s_mov_b32 s71, 0")
    def flat(fl):
        for f in fl:
            if isinstance(f, str): e("  " + f)
            else:
                for x in f: e("  " + x)
    def flat_dma(fl):
        for f in fl:
            if isinstance(f, str):
                e("  " + f)
            else:
                for x in f: e("  " + x)
    e("  s_bitcmp1_b32 s2, 2")
    e(f"  s_cbranch_scc1 {LB}")

    NB = int(os.environ.get("NBA", "4")); ST = 32768; D = 8; NST = 56
    V_DA = 8; V_DW = 12; V_RW = 24
    srd(40, P_WS, SZ_HMID, WS_HMID)
    srd(44, P_W2, 3584*2048)
    e(f"  s_mul_i32 s73, s57, {56*16384}")
    e("  s_lshl_b32 s75, s58, 8")
    for j in range(4):
        e(f"  s_lshl_b32 s74, s56, 8")
        e(f"  s_add_u32 s74, s74, {j*64}")
        e(f"  v_add_u32 v32, s74, v1")
        e(f"  v_lshrrev_b32 v33, 3, v32")
        e(f"  v_and_b32 v34, 7, v32")
        e(f"  v_and_b32 v35, 7, v33")
        e(f"  v_xor_b32 v34, v34, v35")
        e(f"  v_lshlrev_b32 v35, 7, v33")
        e(f"  v_lshl_add_u32 v35, v34, 4, v35")
        e(f"  v_add_u32 v{V_DA+j}, s73, v35")
        e(f"  v_lshrrev_b32 v33, 4, v32")
        e(f"  v_bfe_u32 v34, v32, 1, 3")
        e(f"  v_and_b32 v35, 7, v33")
        e(f"  v_xor_b32 v34, v34, v35")
        e(f"  v_lshlrev_b32 v34, 5, v34")
        e(f"  v_and_b32 v35, 1, v32")
        e(f"  v_lshl_add_u32 v34, v35, 4, v34")
        e(f"  v_and_b32 v35, 0x33, v33")
        e(f"  v_bfe_u32 v36, v33, 2, 1")
        e(f"  v_lshl_or_b32 v35, v36, 3, v35")
        e(f"  v_bfe_u32 v36, v33, 3, 1")
        e(f"  v_lshl_or_b32 v35, v36, 2, v35")
        e(f"  v_lshl_add_u32 v35, v35, 11, v34")
        e(f"  v_add_u32 v{V_DW+j}, s75, v35")
    e("  v_bfe_u32 v32, v1, 5, 1")
    e("  v_lshlrev_b32 v32, 4, v32")
    e("  v_bfe_u32 v33, v1, 4, 1")
    e("  v_lshlrev_b32 v33, 2, v33")
    e("  v_bfe_u32 v34, v1, 2, 2")
    e("  v_add_u32 v33, v33, v34")
    e("  v_add_u32 v32, v32, v33")
    e("  v_lshlrev_b32 v32, 8, v32")
    e("  v_and_b32 v34, 3, v1")
    e("  v_lshl_add_u32 v32, v34, 3, v32")
    e("  v_add_u32 v32, 16384, v32")
    e("  s_lshl_b32 s74, s88, 2")
    for j in range(4):
        e(f"  s_add_u32 s75, s74, {j}")
        e(f"  v_xor_b32 v34, s75, v33")
        e(f"  v_lshl_add_u32 v{V_RW+j}, v34, 5, v32")
    V_PA, V_PB, V_DUM = 28, 29, 30
    PFA = int(os.environ.get("PFA", "0"))
    e("  s_and_b32 s77, s56, 1")
    e("  s_and_b32 s78, s58, 3")
    e("  s_lshl_b32 s78, s78, 5")
    e("  s_lshl_b32 s74, s77, 4")
    e("  s_add_u32 s78, s78, s74")
    e("  v_add_u32 v32, s78, v3")
    e("  v_mul_u32_u24 v33, 7168, v32")
    e("  v_add_u32 v33, s73, v33")
    e("  s_and_b32 s78, s57, 3")
    e("  s_lshl_b32 s78, s78, 4")
    e("  s_lshl_b32 s74, s77, 3")
    e("  s_add_u32 s78, s78, s74")
    e("  v_lshrrev_b32 v34, 1, v3")
    e("  v_add_u32 v34, s78, v34")
    e("  v_lshlrev_b32 v34, 11, v34")
    e("  v_and_b32 v35, 1, v3")
    e("  v_lshl_add_u32 v34, v35, 7, v34")
    e("  s_lshl_b32 s75, s58, 8")
    e("  v_add_u32 v34, s75, v34")
    e("  s_cmp_lt_u32 s56, 2")
    e("  s_cselect_b32 s96, s40, s44")
    e("  s_cselect_b32 s97, s41, s45")
    e("  s_cselect_b32 s98, s42, s46")
    e("  s_mov_b32 s99, 0x00020000")
    e(f"  s_mov_b32 s90, {64*2048}")
    e(f"  s_cselect_b32 s90, 128, s90")
    e("  s_cselect_b64 vcc, -1, 0")
    e(f"  v_cndmask_b32 v{V_PA}, v34, v33, vcc")
    e(f"  s_mul_i32 s89, s90, {NB}")
    def pfA():
        if not PFA: return []
        return [f"buffer_load_dword v{V_DUM}, v{V_PA}, s[96:99], s89 offen", "s_add_u32 s89, s89, s90"]
    def dmaA0():
        f = []
        for j in range(4):
            f.append([f"s_add_u32 s79, s62, s70", f"s_add_u32 m0, s79, {j*1024}"] if j == 0 else [f"s_add_u32 m0, s79, {j*1024}"])
            f.append(f"buffer_load_dwordx4 v{V_DA+j}, s[40:43], s63 offen lds")
        return f
    def dmaA():
        f = []
        for j in range(4):
            f.append(f"s_add_u32 m0, s79, {16384+j*1024}")
            f.append(f"buffer_load_dwordx4 v{V_DW+j}, s[44:47], s64 offen lds")
        f.append(["s_add_u32 s63, s63, 16384", f"s_add_u32 s64, s64, {64*2048}", "s_add_u32 s65, s65, 1"])
        f.append([f"s_add_u32 s62, s62, {ST}", f"s_cmp_ge_u32 s62, {NB*ST}", "s_cselect_b32 s62, 0, s62"])
        f.append([f"s_cmp_ge_u32 s65, {NST}", "s_cselect_b32 s42, 0, s42", "s_cselect_b32 s46, 0, s46"])
        return f
    def a_reads(st, u):
        va = V_RA1 if u else V_RA0
        b = FR + st*32
        r = [f"ds_read_b128 {vr(b+mt*4)}, v{va} offset:{mt*2048}" for mt in range(4)]
        for j in range(4):
            r.append(f"ds_read_b64_tr_b16 {vr(b+16+j*4,2)}, v{V_RW+j} offset:{u*8192}")
            r.append(f"ds_read_b64_tr_b16 {vr(b+18+j*4,2)}, v{V_RW+j} offset:{u*8192+2048}")
        return r
    def a_mfmas(st):
        b = FR + st*32
        return [f"v_mfma_f32_16x16x32_bf16 {vr(ACC+(j*4+mt)*4)}, {vr(b+16+j*4)}, {vr(b+mt*4)}, {vr(ACC+(j*4+mt)*4)}"
                for j in range(4) for mt in range(4)]
    def advA():
        return [["s_add_u32 s71, s71, 1", f"s_cmp_ge_u32 s71, {NB}", f"s_mov_b32 s72, {ST}", f"s_cselect_b32 s72, {-(NB-1)*ST & 0xffffffff}, s72", "s_cselect_b32 s71, 0, s71"]] + \
               [f"v_add_u32 v{x}, s72, v{x}" for x in (V_RA0, V_RA1, V_RW, V_RW+1, V_RW+2, V_RW+3)]
    for s in range(NB-1): flat(dmaA0() + dmaA())
    flat(dmaA0())
    for s in range(PFA): flat(pfA())
    srd(48, P_WS, SZ_G, WS_G)
    e("  s_lshl_b32 s74, s57, 7")
    e("  s_lshl_b32 s75, s87, 6")
    e("  s_add_u32 s74, s74, s75")
    e("  v_add_u32 v32, s74, v3")
    e("  v_lshlrev_b32 v33, 2, v32")
    for mt in range(4):
        e(f"  buffer_load_dword v{40+mt}, v33, s[48:51], 0 offen offset:{mt*64}")
    srd(52, P_WS, SZ_T, WS_T)
    e("  s_lshl_b32 s74, s58, 8")
    e("  s_lshl_b32 s75, s88, 7")
    e("  s_add_u32 s74, s74, s75")
    e("  v_lshlrev_b32 v34, 11, v32")
    e("  v_lshl_add_u32 v34, v4, 3, v34")
    e("  v_add_u32 v34, s74, v34")
    e(f"  s_waitcnt vmcnt({(NB-2)*D + D//2 + 4 + PFA})")
    e("  s_barrier")
    stamp(1)
    flat(a_reads(0, 0))
    e("  s_mov_b32 s84, 0")
    Ll = Lbl.new("K2_A")
    e(f"{Ll}:")
    e("  s_waitcnt lgkmcnt(0)")
    interleave(a_mfmas(0), mix(a_reads(1, 1), dmaA() + pfA()), 0.95)
    e(f"  s_waitcnt vmcnt({(NB-2)*(D + (1 if PFA else 0)) + (1 if PFA else 0)}) lgkmcnt(0)")
    e("  s_barrier")
    interleave(a_mfmas(1), advA() + mix(a_reads(0, 0), dmaA0()), 0.95)
    e("  s_add_u32 s84, s84, 1")
    e(f"  s_cmp_lt_u32 s84, {NST}")
    e(f"  s_cbranch_scc1 {Ll}")
    stamp(2)
    for mt in range(4):
        e(f"  v_sub_f32 v{40+mt}, 1.0, v{40+mt}")
        bf16_round(40+mt, 40+mt, 44)
    for mt in range(4):
        if mt: e(f"  v_add_u32 v34, {16*2048}, v34")
        for j in range(4):
            a = ACC + (j*4+mt)*4
            e(f"  v_cvt_pk_bf16_f32 v44, v{a}, v{a+1}")
            e(f"  v_cvt_pk_bf16_f32 v45, v{a+2}, v{a+3}")
            for i, (src, hi) in enumerate(((44,0),(44,1),(45,0),(45,1))):
                if hi: e(f"  v_and_b32 v{46+i}, 0xffff0000, v{src}")
                else:  e(f"  v_lshlrev_b32 v{46+i}, 16, v{src}")
            for i in range(4): e(f"  v_mul_f32 v{46+i}, v{46+i}, v{40+mt}")
            t = 50 + (j % 4)*2
            e(f"  v_cvt_pk_bf16_f32 v{t}, v46, v47")
            e(f"  v_cvt_pk_bf16_f32 v{t+1}, v48, v49")
            e(f"  buffer_store_dwordx2 {vr(t,2)}, v34, s[52:55], 0 offen offset:{j*32} sc0 sc1")
    srd(48, P_DBG, 256)
    e("  s_lshr_b32 s74, s60, 1")
    e("  s_lshl_b32 s74, s74, 2")
    e("  s_and_b32 s75, s60, 1")
    e("  s_lshl_b32 s75, 1, s75")
    e("  s_waitcnt vmcnt(0)")
    e("  s_barrier")
    e("  s_cmp_lg_u32 s56, 0")
    e(f"  s_cbranch_scc1 K2_A_done")
    e("  s_mov_b64 exec, 1")
    e("  v_mov_b32 v20, s75")
    e("  v_mov_b32 v21, 0")
    e("  buffer_atomic_or v20, v21, s[48:51], s74 offen sc1")
    e("  s_mov_b64 exec, -1")
    e("K2_A_done:")
    stamp(3)
    stamp_flush(1, 4)
    e(f"  s_branch {Lend}")

    e(f"{LB}:")
    NB = 3; ST = 49152; D = 12; NST = 32
    V_DA = 8; V_DW = 12; V_RW0, V_RW1 = 24, 25
    srd(40, P_WS, SZ_H, WS_HHI)
    srd(48, P_WS, SZ_H, WS_HLO)
    srd(44, P_CRE, 1024*2048)
    e("  s_lshl_b32 s73, s57, 19")
    e("  s_lshl_b32 s75, s58, 18")
    for j in range(4):
        e(f"  s_lshl_b32 s74, s56, 8")
        e(f"  s_add_u32 s74, s74, {j*64}")
        e(f"  v_add_u32 v32, s74, v1")
        e(f"  v_lshrrev_b32 v33, 3, v32")
        e(f"  v_and_b32 v34, 7, v32")
        e(f"  v_and_b32 v35, 7, v33")
        e(f"  v_xor_b32 v34, v34, v35")
        e(f"  v_lshlrev_b32 v34, 4, v34")
        e(f"  v_lshl_add_u32 v35, v33, 7, v34")
        e(f"  v_add_u32 v{V_DA+j}, s73, v35")
        e(f"  v_lshl_add_u32 v35, v33, 11, v34")
        e(f"  v_add_u32 v{V_DW+j}, s75, v35")
    e("  s_lshl_b32 s74, s88, 13")
    e("  s_add_u32 s74, s74, 32768")
    e(f"  v_add_u32 v{V_RW0}, s74, v31")
    e(f"  v_xor_b32 v{V_RW1}, 64, v{V_RW0}")
    V_PA, V_PB, V_DUM = 28, 29, 30
    e("  s_and_b32 s77, s56, 1")
    e("  s_lshl_b32 s77, s77, 6")
    e("  v_add_u32 v32, s77, v1")
    e("  v_lshlrev_b32 v33, 12, v32")
    e(f"  v_add_u32 v{V_PA}, s73, v33")
    e("  v_lshlrev_b32 v33, 11, v32")
    e(f"  v_add_u32 v{V_PB}, s75, v33")
    e("  s_cmp_lt_u32 s56, 2")
    e("  s_cselect_b32 s96, s40, s48")
    e("  s_cselect_b32 s97, s41, s49")
    e("  s_mov_b32 s98, s42")
    e("  s_mov_b32 s99, 0x00020000")
    srd(92, P_CRE, 1024*2048)
    PFB = 0
    e(f"  s_mov_b32 s89, {NB*128}")
    e(f"  s_mov_b32 s90, {NB*128}")
    e(f"  s_mov_b32 s91, {NB}")
    def pfB():
        return [f"buffer_load_dword v{V_DUM}, v{V_PA}, s[96:99], s89 offen",
                f"buffer_load_dword v{V_DUM}, v{V_PB}, s[92:95], s90 offen",
                ["s_add_u32 s89, s89, 128", "s_add_u32 s90, s90, 128", "s_add_u32 s91, s91, 1"],
                ["s_cmp_eq_u32 s91, 16", f"s_cselect_b32 s92, s{P_CIM}, s92", f"s_cselect_b32 s93, s{P_CIM+1}, s93", "s_cselect_b32 s90, 0, s90"]]
    def EARLY_B():
        srd(52, P_WS, SZ_G, WS_G)
        e("  s_lshl_b32 s74, s57, 7")
        e("  s_lshl_b32 s77, s87, 6")
        e("  s_add_u32 s74, s74, s77")
        e("  v_add_u32 v32, s74, v3")
        e("  v_lshlrev_b32 v33, 2, v32")
        for mt in range(4):
            e(f"  buffer_load_dword v{40+mt}, v33, s[52:55], 0 offen offset:{mt*64}")
        srd(52, P_DSK, 2048)
        e("  s_lshl_b32 s74, s58, 8")
        e("  s_lshl_b32 s77, s88, 7")
        e("  s_add_u32 s74, s74, s77")
        e("  v_lshl_add_u32 v35, v4, 3, s74")
        for j in range(4):
            e(f"  buffer_load_dwordx2 v[{44+2*j}:{45+2*j}], v35, s[52:55], 0 offen offset:{j*32}")
        e("  v_lshl_add_u32 v36, v32, 11, v35")
        srd(52, P_X, 2048*2048)
        for mt in range(4):
            for j in range(4):
                r = 224 + (mt*4+j)*2
                e(f"  s_mov_b32 s74, {mt*16*2048}")
                e(f"  buffer_load_dwordx2 v[{r}:{r+1}], v36, s[52:55], s74 offen offset:{j*32}")
    def dmaB0():
        f = []
        for j in range(4):
            f.append([f"s_add_u32 s79, s62, s70", f"s_add_u32 m0, s79, {j*1024}"] if j == 0 else [f"s_add_u32 m0, s79, {j*1024}"])
            f.append(f"buffer_load_dwordx4 v{V_DA+j}, s[40:43], s63 offen lds")
        for j in range(2):
            f.append(f"s_add_u32 m0, s79, {16384+j*1024}")
            f.append(f"buffer_load_dwordx4 v{V_DA+j}, s[48:51], s63 offen lds")
        return f
    def dmaB():
        f = []
        for j in range(2, 4):
            f.append(f"s_add_u32 m0, s79, {16384+j*1024}")
            f.append(f"buffer_load_dwordx4 v{V_DA+j}, s[48:51], s63 offen lds")
        for j in range(4):
            f.append(f"s_add_u32 m0, s79, {32768+j*1024}")
            f.append(f"buffer_load_dwordx4 v{V_DW+j}, s[44:47], s64 offen lds")
        f.append(["s_add_u32 s63, s63, 16384", "s_add_u32 s64, s64, 128", "s_add_u32 s65, s65, 1"])
        f.append([f"s_add_u32 s62, s62, {ST}", f"s_cmp_ge_u32 s62, {NB*ST}", "s_cselect_b32 s62, 0, s62"])
        f.append(["s_cmp_eq_u32 s65, 16", f"s_cselect_b32 s44, s{P_CIM}, s44", f"s_cselect_b32 s45, s{P_CIM+1}, s45", "s_cselect_b32 s64, 0, s64"])
        f.append([f"s_cmp_ge_u32 s65, {NST}", "s_cselect_b32 s42, 0, s42", "s_cselect_b32 s46, 0, s46", "s_cselect_b32 s50, 0, s50"])
        return f
    def b_reads(st, u):
        va = V_RA1 if u else V_RA0; vw = V_RW1 if u else V_RW0
        b = FR + st*48
        r = [f"ds_read_b128 {vr(b+32+j*4)}, v{vw} offset:{j*2048}" for j in range(4)]
        r += [f"ds_read_b128 {vr(b+mt*4)}, v{va} offset:{mt*2048}" for mt in range(4)]
        r += [f"ds_read_b128 {vr(b+16+mt*4)}, v{va} offset:{16384+mt*2048}" for mt in range(4)]
        return r
    def b_mfmas(st):
        b = FR + st*48
        m = []
        for hl in range(2):
            for j in range(4):
                for mt in range(4):
                    acc = vr(ACC+(j*4+mt)*4)
                    m.append(f"v_mfma_f32_16x16x32_bf16 {acc}, {vr(b+32+j*4)}, {vr(b+hl*16+mt*4)}, {acc}")
        return m
    def advB():
        return [["s_add_u32 s71, s71, 1", f"s_cmp_ge_u32 s71, {NB}", f"s_mov_b32 s72, {ST}", f"s_cselect_b32 s72, {-(NB-1)*ST & 0xffffffff}, s72", "s_cselect_b32 s71, 0, s71"]] + \
               [f"v_add_u32 v{x}, s72, v{x}" for x in (V_RA0, V_RA1, V_RW0, V_RW1)]
    for s in range(NB-1): flat(dmaB0() + dmaB())
    flat(dmaB0())
    EARLY_B()
    e(f"  s_waitcnt vmcnt({(NB-2)*D + D//2 + 24})")
    e("  s_barrier")
    stamp(1)
    flat(b_reads(0, 0))
    e("  s_mov_b32 s84, 0")
    Ll = Lbl.new("K2_B")
    e(f"{Ll}:")
    e("  s_waitcnt lgkmcnt(0)")
    interleave(b_mfmas(0), mix(b_reads(1, 1), dmaB()), 0.9)
    e(f"  s_waitcnt vmcnt({(NB-2)*D}) lgkmcnt(0)")
    e("  s_barrier")
    interleave(b_mfmas(1), advB() + mix(b_reads(0, 0), dmaB0()), 0.9)
    e("  s_add_u32 s84, s84, 1")
    e(f"  s_cmp_lt_u32 s84, {NST}")
    e(f"  s_cbranch_scc1 {Ll}")
    stamp(2)
    for j in range(4):
        for i in range(4):
            src = 44+2*j+(i >> 1)
            if i & 1: e(f"  v_and_b32 v{192+j*4+i}, 0xffff0000, v{src}")
            else:     e(f"  v_lshlrev_b32 v{192+j*4+i}, 16, v{src}")
    for mt in range(4):
        for j in range(4):
            a = ACC + (j*4+mt)*4; xr = 224 + (mt*4+j)*2
            for i in range(4):
                src = xr + (i >> 1)
                if i & 1: e(f"  v_and_b32 v{52+i}, 0xffff0000, v{src}")
                else:     e(f"  v_lshlrev_b32 v{52+i}, 16, v{src}")
            e(f"  v_pk_mul_f32 v[52:53], v[52:53], v[{192+j*4}:{193+j*4}]")
            e(f"  v_pk_mul_f32 v[54:55], v[54:55], v[{194+j*4}:{195+j*4}]")
            e(f"  v_cvt_pk_bf16_f32 v56, v52, v53")
            e(f"  v_cvt_pk_bf16_f32 v57, v54, v55")
            for i, (src, hi) in enumerate(((56,0),(56,1),(57,0),(57,1))):
                if hi: e(f"  v_and_b32 v{52+i}, 0xffff0000, v{src}")
                else:  e(f"  v_lshlrev_b32 v{52+i}, 16, v{src}")
            for i in range(4): e(f"  v_fma_f32 v{a+i}, 2.0, v{a+i}, v{52+i}")
            for i in range(4): e(f"  v_mul_f32 v{a+i}, v{a+i}, v{40+mt}")
    srd(48, P_DBG, 256)
    srd(52, P_WS, SZ_T, WS_T)
    e("  s_lshr_b32 s74, s60, 1")
    e("  s_lshl_b32 s74, s74, 2")
    e("  s_and_b32 s75, s60, 1")
    e("  s_lshl_b32 s75, 1, s75")
    e("  s_mov_b32 s78, 0")
    e("  v_mov_b32 v37, 0")
    Lp = Lbl.new("K2_poll"); Lg = Lbl.new("K2_got")
    e(f"{Lp}:")
    e("  buffer_load_dword v38, v37, s[48:51], s74 offen sc1")
    e("  s_waitcnt vmcnt(0)")
    e("  v_readfirstlane_b32 s79, v38")
    e("  s_add_u32 s78, s78, 1")
    e("  s_and_b32 s79, s79, s75")
    e(f"  s_cbranch_scc1 {Lg}")
    e("  s_cmp_gt_u32 s78, 0x100000")
    e(f"  s_cbranch_scc1 {Lg}")
    e("  s_sleep 1")
    e(f"  s_branch {Lp}")
    e(f"{Lg}:")
    stamp(3)
    for mt in range(4):
        for j in range(4):
            r = 160 + (mt*4+j)*2
            e(f"  s_mov_b32 s74, {mt*16*2048}")
            e(f"  buffer_load_dwordx2 v[{r}:{r+1}], v36, s[52:55], s74 offen offset:{j*32} sc0 sc1")
    srd(48, P_OUT, 2048*1024*4)
    e("  v_lshlrev_b32 v36, 1, v36")
    for mt in range(4):
        for j in range(4):
            a = ACC + (j*4+mt)*4; tr = 160 + (mt*4+j)*2
            e(f"  s_waitcnt vmcnt({15 - (mt*4+j) + (mt*4+j)})") if False else None
            e(f"  s_waitcnt vmcnt({15})") if (mt*4+j) == 0 else None
            for i in range(4):
                src = tr + (i >> 1)
                if i & 1: e(f"  v_and_b32 v{56+i}, 0xffff0000, v{src}")
                else:     e(f"  v_lshlrev_b32 v{56+i}, 16, v{src}")
            e(f"  v_pk_add_f32 v[{a}:{a+1}], v[{a}:{a+1}], v[56:57]")
            e(f"  v_pk_add_f32 v[{a+2}:{a+3}], v[{a+2}:{a+3}], v[58:59]")
            e(f"  s_mov_b32 s74, {mt*16*4096}")
            e(f"  buffer_store_dwordx4 {vr(a)}, v36, s[48:51], s74 offen offset:{j*64}{WT2}")
            if (mt*4+j) < 15: e(f"  s_waitcnt vmcnt(15)")
    if PROF: e("  s_waitcnt vmcnt(0)")
    stamp(4)
    stamp_flush(1, 5)
    e(f"{Lend}:")
    e("  s_endpgm")

def desc(name, vgpr, accum):
    e(f".amdhsa_kernel {name}")
    e(f"  .amdhsa_next_free_vgpr {vgpr}")
    e("  .amdhsa_next_free_sgpr 102")
    e(f"  .amdhsa_accum_offset {accum}")
    e("  .amdhsa_group_segment_fixed_size 0")
    e("  .amdhsa_kernarg_size 136")
    e("  .amdhsa_user_sgpr_count 2")
    e("  .amdhsa_user_sgpr_kernarg_segment_ptr 1")
    e("  .amdhsa_system_sgpr_workgroup_id_x 1")
    e(".end_amdhsa_kernel")

def main():
    hdr = open("gated_mix__ssm_conv_s5__glu_gated_swiglu__prompt.s.ref").read().split("\n")
    for l in hdr:
        if l.startswith("; @launch"): break
        e(l)
    e("; @launch kernel=gm_phase1_kernel grid=(256,1,1) block=(256,1,1) lds=139264")
    e("; @launch kernel=gm_phase2_kernel grid=(256,1,1) block=(256,1,1) lds=163840")
    e('.amdgcn_target "amdgcn-amd-amdhsa--gfx950"')
    e(".text")
    kernel1()
    kernel2()
    e('.section .rodata,"a"')
    e(".p2align 6")
    desc("gm_phase1_kernel", 512, 256)
    e(".p2align 6")
    desc("gm_phase2_kernel", 256, 256)
    open(sys.argv[1] if len(sys.argv) > 1 else "gated_mix__ssm_conv_s5__glu_gated_swiglu__prompt.s", "w").write("\n".join(OUT) + "\n")

main()
```

```python
import sys

OUT = []
def e(s=""):
    if OUT and " lds" in s and s.strip().startswith("buffer_load") and " m0," in OUT[-1]:
        OUT.append("  s_nop 0")
    OUT.append(s)

class Lbl:
    n = 0
    @staticmethod
    def new(p="L"):
        Lbl.n += 1
        return f"{p}_{Lbl.n}"

WS_HMID = 0x0;        SZ_HMID = 2048*3584*2
WS_HHI  = 0x1000000;  SZ_H = 2048*2048*2
WS_HLO  = 0x1800000
WS_T    = 0x2000000;  SZ_T = 2048*1024*2
WS_G    = 0x2400000;  SZ_G = 2048*4
WS_AGG  = 0x2410000;  SZ_AGG = 8*512*16

P_X, P_LRE, P_LIM, P_BRE, P_BIM, P_CRE, P_CIM, P_LDT = 4, 6, 8, 10, 12, 14, 16, 18
P_DSK, P_BX, P_W1, P_W3, P_W2, P_GW, P_OUT, P_DBG = 20, 22, 24, 26, 28, 30, 32, 34
P_WS = 36

def srd(d, p, nbytes, off=0):
    if off:
        e(f"  s_add_u32 s{d}, s{p}, 0x{off:x}")
        e(f"  s_addc_u32 s{d+1}, s{p+1}, 0")
    else:
        e(f"  s_mov_b32 s{d}, s{p}")
        e(f"  s_mov_b32 s{d+1}, s{p+1}")
    e(f"  s_mov_b32 s{d+2}, 0x{nbytes:x}")
    e(f"  s_mov_b32 s{d+3}, 0x00020000")

def load_ptrs():
    e("  s_load_dwordx16 s[4:19], s[0:1], 0")
    e("  s_load_dwordx16 s[20:35], s[0:1], 64")
    e("  s_load_dwordx2 s[36:37], s[0:1], 128")

def vr(b, n=4): return f"v[{b}:{b+n-1}]"
def ar(b, n=4): return f"a[{b}:{b+n-1}]"

def interleave(mfmas, fillers, frac=0.8):
    M = len(mfmas); F = len(fillers)
    span = max(1, int(M*frac))
    done = 0
    for i, m in enumerate(mfmas):
        e("  " + m)
        want = min(F, ((i+1)*F + span - 1)//span)
        while done < want:
            f = fillers[done]; done += 1
            if isinstance(f, str): e("  " + f)
            else:
                for x in f: e("  " + x)
    while done < F:
        f = fillers[done]; done += 1
        if isinstance(f, str): e("  " + f)
        else:
            for x in f: e("  " + x)

PROF = len(sys.argv) > 2 and sys.argv[2] == "prof"
import os
EXP = os.environ.get("EXP", "")
WT = os.environ.get("WT", "")
WT2 = os.environ.get("WT2", "")
STAMP = dict(t=14, regs=[16,17,20,21,22,23,28,29,32,33])
def stamp(i):
    if not PROF: return
    t = STAMP["t"]
    e(f"  s_memrealtime s[{t}:{t+1}]" if os.environ.get("RT") else f"  s_memtime s[{t}:{t+1}]")
    e("  s_waitcnt lgkmcnt(0)")
    e(f"  s_mov_b32 s{STAMP['regs'][i]}, s{t}")
def stamp_flush(kid, n):
    if not PROF: return
    srd(48, P_WS, 0x100000, 0x3000000 + kid*0x10000)
    t = STAMP["t"]
    e(f"  s_lshl_b32 s{t}, s2, 8")
    e(f"  s_lshl_b32 s{t+1}, s56, 6")
    e(f"  s_add_u32 s{t}, s{t}, s{t+1}")
    e("  v_mov_b32 v251, 0")
    for i in range(n):
        e(f"  v_mov_b32 v250, s{STAMP['regs'][i]}")
        e(f"  buffer_store_dword v250, v251, s[48:51], s{t} offen offset:{i*4}")
        e("  s_waitcnt vmcnt(0)")

def bf16_round(dst, src, tmp):
    e(f"  v_cvt_pk_bf16_f32 v{tmp}, v{src}, v{src}")
    e(f"  v_lshlrev_b32 v{dst}, 16, v{tmp}")

def mix(reads, dma):
    groups = []
    i = 0
    while i < len(dma):
        f = dma[i]
        txt = f if isinstance(f, str) else " ".join(f)
        if " m0," in txt and i + 1 < len(dma):
            groups.append([dma[i], dma[i+1]]); i += 2
        else:
            groups.append([dma[i]]); i += 1
    out = []
    n = len(reads); g = len(groups)
    gi = 0
    for k, r in enumerate(reads):
        out.append(r)
        want = ((k+1)*g)//n
        while gi < want:
            out += groups[gi]; gi += 1
    while gi < g:
        out += groups[gi]; gi += 1
    return out

def flat(fl):
    for f in fl:
        if isinstance(f, str): e("  " + f)
        else:
            for x in f: e("  " + x)

def kernel1():
    K = "gm_phase1_kernel"
    e(f".globl {K}\n.p2align 8\n.type {K},@function\n{K}:")
    Lend = "K1_end"
    e("  s_cmp_ge_u32 s2, 256")
    e(f"  s_cbranch_scc1 {Lend}")
    load_ptrs()
    e("  v_and_b32 v1, 63, v0")
    e("  v_lshrrev_b32 v2, 6, v0")
    e("  s_nop 0")
    e("  v_readfirstlane_b32 s56, v2")
    e("  v_and_b32 v3, 15, v1")
    e("  v_lshrrev_b32 v4, 4, v1")
    e("  s_lshr_b32 s57, s2, 3")
    e("  s_and_b32 s57, s57, 7")
    e("  s_and_b32 s58, s2, 7")
    e("  s_lshl_b32 s58, s58, 2")
    e("  s_lshr_b32 s59, s2, 6")
    e("  s_add_u32 s58, s58, s59")
    NBUF = 4; STG = 34816; D = 9
    OFF_W = 16384; OFF_S = 30720
    V_DA = 8
    V_DW = 12
    V_DS = 16
    V_RA = 17; V_RW = 18; V_RS = 19
    AFR = 32
    SACC = 64
    GACC = 128
    UACC = 0
    FR = 112
    TMP = 20
    e("  s_lshl_b32 s73, s57, 19")
    for j in range(4):
        e(f"  s_lshl_b32 s74, s56, 8")
        e(f"  s_add_u32 s74, s74, {j*64}")
        e(f"  v_add_u32 v20, s74, v1")
        e(f"  v_lshrrev_b32 v21, 2, v20")
        e(f"  v_and_b32 v22, 3, v20")
        e(f"  v_bfe_u32 v23, v21, 3, 1")
        e(f"  v_mul_u32_u24 v23, 3, v23")
        e(f"  v_xor_b32 v22, v22, v23")
        e(f"  v_lshlrev_b32 v21, 11, v21")
        e(f"  v_lshl_add_u32 v21, v22, 4, v21")
        e(f"  v_add_u32 v{V_DA+j}, s73, v21")
    e("  s_mul_i32 s75, s58, 224")
    e("  s_and_b32 s76, s56, 1")
    e("  s_lshl_b32 s76, s76, 2")
    e("  s_lshr_b32 s77, s56, 1")
    e("  s_mul_i32 s77, s77, 7168")
    e(f"  s_add_u32 s77, s77, {OFF_W}")
    for j in range(4):
        e(f"  s_add_u32 s74, s76, {j}")
        e(f"  s_min_u32 s74, s74, 6")
        e(f"  s_lshl_b32 s78, s74, 10")
        e(f"  s_add_u32 s{66+j}, s78, s77")
        e(f"  s_lshl_b32 s74, s74, 6")
        e(f"  v_add_u32 v20, s74, v1")
        e(f"  v_mul_u32_u24 v21, 4682, v20")
        e(f"  v_lshrrev_b32 v21, 16, v21")
        e(f"  v_mul_u32_u24 v22, 14, v21")
        e(f"  v_sub_u32 v22, v20, v22")
        e(f"  v_and_b32 v23, 0x13, v21")
        e(f"  v_bfe_u32 v24, v21, 2, 1")
        e(f"  v_lshl_or_b32 v23, v24, 3, v23")
        e(f"  v_bfe_u32 v24, v21, 3, 1")
        e(f"  v_lshl_or_b32 v23, v24, 2, v23")
        e(f"  v_mul_u32_u24 v23, 7168, v23")
        e(f"  v_lshl_add_u32 v23, v22, 4, v23")
        e(f"  v_add_u32 v{V_DW+j}, s75, v23")
    e("  s_lshl_b32 s74, s56, 6")
    e("  v_add_u32 v20, s74, v1")
    e("  v_lshrrev_b32 v21, 2, v20")
    e("  v_and_b32 v22, 3, v20")
    e("  v_bfe_u32 v23, v21, 3, 1")
    e("  v_mul_u32_u24 v23, 3, v23")
    e("  v_xor_b32 v22, v22, v23")
    e("  v_and_b32 v21, 31, v21")
    e("  v_lshlrev_b32 v21, 11, v21")
    e("  v_lshl_add_u32 v21, v22, 4, v21")
    e("  s_lshl_b32 s74, s58, 16")
    e(f"  v_add_u32 v{V_DS}, s74, v21")
    e("  s_lshl_b32 s70, s56, 12")
    e("  s_lshl_b32 s80, s56, 10")
    e(f"  s_add_u32 s80, s80, {OFF_S}")
    e("  v_bfe_u32 v20, v1, 3, 1")
    e("  v_mul_u32_u24 v20, 3, v20")
    e("  v_xor_b32 v20, v20, v4")
    e("  v_lshlrev_b32 v20, 4, v20")
    e("  v_lshl_add_u32 v20, v3, 6, v20")
    e(f"  v_add_u32 v{V_RA}, s70, v20")
    e(f"  v_add_u32 v{V_RS}, {OFF_S}, v20")
    e("  v_bfe_u32 v20, v1, 5, 1")
    e("  v_lshlrev_b32 v20, 4, v20")
    e("  v_bfe_u32 v21, v1, 4, 1")
    e("  v_lshl_add_u32 v20, v21, 2, v20")
    e("  v_bfe_u32 v21, v1, 2, 2")
    e("  v_add_u32 v20, v20, v21")
    e("  v_mul_u32_u24 v20, 224, v20")
    e("  v_and_b32 v21, 3, v1")
    e("  v_lshl_add_u32 v20, v21, 3, v20")
    e(f"  v_add_u32 v{V_RW}, {OFF_W}, v20")
    for r in (62, 63, 64, 65, 71): e(f"  s_mov_b32 s{r}, 0")
    e("  s_waitcnt lgkmcnt(0)")
    stamp(0)
    srd(40, P_X, 2048*2048)
    e("  s_cmp_lt_u32 s56, 2")
    e(f"  s_cselect_b32 s44, s{P_W1}, s{P_W3}")
    e(f"  s_cselect_b32 s45, s{P_W1+1}, s{P_W3+1}")
    e(f"  s_mov_b32 s46, 0x{1024*7168:x}")
    e("  s_mov_b32 s47, 0x00020000")
    e(f"  s_cselect_b32 s96, s{P_BRE}, s{P_BIM}")
    e(f"  s_cselect_b32 s97, s{P_BRE+1}, s{P_BIM+1}")
    e(f"  s_mov_b32 s98, 0x{1024*2048:x}")
    e("  s_mov_b32 s99, 0x00020000")

    def dma_stage():
        f = []
        for j in range(4):
            f.append([f"s_add_u32 s79, s62, s70", f"s_add_u32 m0, s79, {j*1024}"] if j == 0 else [f"s_add_u32 m0, s79, {j*1024}"])
            f.append(f"buffer_load_dwordx4 v{V_DA+j}, s[40:43], s63 offen lds")
        for j in range(4):
            f.append(f"s_add_u32 m0, s62, s{66+j}")
            f.append(f"buffer_load_dwordx4 v{V_DW+j}, s[44:47], s64 offen lds")
        f.append(f"s_add_u32 m0, s62, s80")
        f.append(f"buffer_load_dwordx4 v{V_DS}, s[96:99], s63 offen lds")
        f.append(["s_add_u32 s63, s63, 64", f"s_add_u32 s64, s64, {32*7168}", "s_add_u32 s65, s65, 1"])
        f.append([f"s_add_u32 s62, s62, {STG}", f"s_cmp_ge_u32 s62, {NBUF*STG}", "s_cselect_b32 s62, 0, s62"])
        f.append(["s_cmp_ge_u32 s65, 32", "s_cselect_b32 s42, 0, s42", "s_cselect_b32 s46, 0, s46", "s_cselect_b32 s98, 0, s98"])
        return f
    flat(dma_stage())
    srd(48, P_GW, 2048)
    e("  s_lshl_b32 s60, s2, 3")
    e("  s_lshl_b32 s61, s56, 1")
    e("  s_add_u32 s60, s60, s61")
    e("  s_lshl_b32 s61, s60, 11")
    e("  v_lshlrev_b32 v5, 5, v1")
    e("  buffer_load_dwordx4 v[20:23], v5, s[48:51], 0 offen")
    e("  buffer_load_dwordx4 v[24:27], v5, s[48:51], 0 offen offset:16")
    e("  buffer_load_dwordx4 v[240:243], v5, s[40:43], s61 offen")
    e("  buffer_load_dwordx4 v[244:247], v5, s[40:43], s61 offen offset:16")
    e("  buffer_load_dwordx4 v[248:251], v5, s[40:43], s61 offen offset:2048")
    e("  buffer_load_dwordx4 v[252:255], v5, s[40:43], s61 offen offset:2064")
    e("  s_lshl_b32 s74, s58, 6")
    e("  v_lshl_add_u32 v28, v3, 2, s74")
    srd(48, P_LRE, 2048)
    e("  buffer_load_dword v29, v28, s[48:51], 0 offen")
    srd(48, P_LIM, 2048)
    e("  buffer_load_dword v30, v28, s[48:51], 0 offen")
    srd(48, P_LDT, 2048)
    e("  buffer_load_dword v31, v28, s[48:51], 0 offen")
    zer = []
    for i in range(112):
        zer.append(f"v_mov_b32 v{GACC+i}, 0")
        zer.append(f"v_accvgpr_write_b32 a{UACC+i}, 0")
    for i in range(64): zer.append(f"v_mov_b32 v{SACC+i}, 0")
    dl = []
    for s_ in range(NBUF-1): dl += dma_stage()
    interleave(zer, dl, 1.0)

    def g_compute():
        for row in range(2):
            e(f"  v_mov_b32 v{28+row}, 0")
            for d in range(8):
                xv = 240 + row*8 + d; gv = 20 + d
                e(f"  v_lshlrev_b32 v32, 16, v{xv}")
                e(f"  v_lshlrev_b32 v33, 16, v{gv}")
                e(f"  v_and_b32 v34, 0xffff0000, v{xv}")
                e(f"  v_and_b32 v35, 0xffff0000, v{gv}")
                e(f"  v_pk_mul_f32 v[32:33], v[32:33], v[32:33] op_sel:[0,1] op_sel_hi:[0,1]") if False else None
                e(f"  v_mul_f32 v32, v32, v33")
                e(f"  v_mul_f32 v34, v34, v35")
                e(f"  v_cvt_pk_bf16_f32 v32, v32, v34")
                e(f"  v_lshlrev_b32 v33, 16, v32")
                e(f"  v_and_b32 v34, 0xffff0000, v32")
                e(f"  v_add_f32 v{28+row}, v{28+row}, v33")
                e(f"  v_add_f32 v{28+row}, v{28+row}, v34")
        for off in (0x041F, 0x081F, 0x101F, 0x201F, 0x401F):
            e(f"  ds_swizzle_b32 v30, v28 offset:0x{off:04X}")
            e(f"  ds_swizzle_b32 v31, v29 offset:0x{off:04X}")
            e("  s_waitcnt lgkmcnt(0)")
            e("  v_add_f32 v28, v28, v30")
            e("  v_add_f32 v29, v29, v31")
        e("  s_nop 1")
        e("  v_readlane_b32 s81, v28, 32")
        e("  v_readlane_b32 s82, v29, 32")
        e("  s_nop 1")
        e("  v_add_f32 v28, s81, v28")
        e("  v_add_f32 v29, s82, v29")
        srd(48, P_WS, SZ_G, WS_G)
        for row in range(2):
            v = 28 + row
            bf16_round(v, v, 32)
            e(f"  v_mul_f32 v33, 0xbfb8aa3b, v{v}")
            e(f"  v_exp_f32 v33, v33")
            e("  s_nop 0")
            e(f"  v_add_f32 v33, 1.0, v33")
            e(f"  v_rcp_f32 v33, v33")
            e("  s_nop 0")
            bf16_round(v, 33, 32)
        e("  s_lshl_b32 s61, s60, 2")
        e("  v_mov_b32 v33, 0")
        e("  s_mov_b64 s[82:83], exec")
        e("  s_mov_b64 exec, 1")
        e("  buffer_store_dword v28, v33, s[48:51], s61 offen")
        e("  buffer_store_dword v29, v33, s[48:51], s61 offen offset:4")
        e("  s_mov_b64 exec, s[82:83]")

    def f_act(st, mt): return AFR + st*16 + mt*4
    def f_w(st, nt): return FR + st*72 + nt*4
    def reads(st):
        r = []
        for mt in range(4):
            r.append(f"ds_read_b128 {vr(f_act(st,mt))}, v{V_RA} offset:{mt*1024}")
        for nt in range(14):
            base = (nt % 7)*32 + (7168 if nt >= 7 else 0)
            b = f_w(st, nt)
            r.append(f"ds_read_b64_tr_b16 {ar(b,2)}, v{V_RW} offset:{base}")
            r.append(f"ds_read_b64_tr_b16 {ar(b+2,2)}, v{V_RW} offset:{base+8*224}")
        for q in range(4):
            r.append(f"ds_read_b128 {ar(f_w(st,14+q))}, v{V_RS} offset:{q*1024}")
        return r
    def mfmas(st):
        m = []
        for nt in range(18):
            for mt in range(4):
                if nt < 7: acc = vr(GACC + (nt*4+mt)*4)
                elif nt < 14: acc = ar(UACC + ((nt-7)*4+mt)*4)
                else: acc = vr(SACC + ((nt-14)*4+mt)*4)
                m.append(f"v_mfma_f32_16x16x32_bf16 {acc}, {ar(f_w(st,nt))}, {vr(f_act(st,mt))}, {acc}")
        return m
    def adv_read():
        return [["s_add_u32 s71, s71, 1", f"s_cmp_ge_u32 s71, {NBUF}", f"s_mov_b32 s72, {STG}", f"s_cselect_b32 s72, {-(NBUF-1)*STG & 0xffffffff}, s72", "s_cselect_b32 s71, 0, s71"],
                f"v_add_u32 v{V_RA}, s72, v{V_RA}", f"v_add_u32 v{V_RW}, s72, v{V_RW}", f"v_add_u32 v{V_RS}, s72, v{V_RS}"]
    e(f"  s_waitcnt vmcnt({(NBUF-1)*D + 9})")
    e("  s_barrier")
    stamp(1)
    flat(reads(0))
    e("  s_mov_b32 s84, 0")
    Lloop = Lbl.new("K1_main")
    e(f"{Lloop}:")
    for half in range(2):
        e(f"  s_waitcnt vmcnt({(NBUF-2)*D}) lgkmcnt(0)")
        if "nobar" not in EXP: e("  s_barrier")
        fl = adv_read() + mix(reads(1-half), dma_stage())
        interleave(mfmas(half), fl, 0.95)
    e("  s_add_u32 s84, s84, 1")
    e("  s_cmp_lt_u32 s84, 16")
    e(f"  s_cbranch_scc1 {Lloop}")
    e("  s_waitcnt vmcnt(0) lgkmcnt(0)")
    e("  s_barrier")
    stamp(2)
    e("  v_mov_b32 v36, v29\n  v_mov_b32 v37, v30\n  v_mov_b32 v38, v31")
    g_compute()

    UST = 272; EOFF = 69632
    e("  s_lshl_b32 s74, s56, 6")
    e("  v_add_u32 v20, s74, v3")
    e(f"  v_mul_u32_u24 v20, {UST}, v20")
    e("  v_lshl_add_u32 v20, v4, 4, v20")
    for p in range(2):
        for j in range(2):
            for mt in range(4):
                e(f"  ds_write_b128 v20, {vr(SACC + p*32 + (j*4+mt)*4)} offset:{mt*16*UST + j*64 + p*128}")
    e("  s_lshl_b32 s74, s56, 2")
    e("  v_add_u32 v34, s74, v4")
    e("  s_lshl_b32 s74, s58, 6")
    e("  v_lshl_add_u32 v35, v3, 2, s74")
    e("  s_waitcnt lgkmcnt(0)")
    e("  s_barrier")
    e(f"  v_lshlrev_b32 v62, 4, v34")
    e(f"  v_mul_u32_u24 v62, {UST}, v62")
    e("  v_lshl_add_u32 v62, v3, 3, v62")
    def u_reads():
        for i in range(16):
            e(f"  ds_read_b64 v[{64+4*i}:{65+4*i}], v62 offset:{i*UST}")
            e(f"  ds_read_b64 v[{66+4*i}:{67+4*i}], v62 offset:{i*UST+128}")
    u_reads()
    for (src, dst) in ((36, 40), (37, 42), (38, 44)):
        e(f"  v_lshlrev_b32 v{dst}, 16, v{src}")
        e(f"  v_and_b32 v{dst+1}, 0xffff0000, v{src}")
    for c in range(2):
        e(f"  v_mul_f32 v{44+c}, 0x3fb8aa3b, v{44+c}")
        e(f"  v_exp_f32 v{44+c}, v{44+c}")
        e("  s_nop 0")
        bf16_round(44+c, 44+c, 32)
        e(f"  v_mul_f32 v46, v{44+c}, v{40+c}")
        e(f"  v_mul_f32 v47, v{44+c}, v{42+c}")
        e(f"  v_mul_f32 v46, 0x3fb8aa3b, v46")
        e(f"  v_exp_f32 v46, v46")
        e(f"  v_mul_f32 v47, 0.15915494, v47")
        e(f"  v_fract_f32 v47, v47")
        e(f"  v_cos_f32 v48, v47")
        e(f"  v_sin_f32 v49, v47")
        e("  s_nop 0")
        e(f"  v_mul_f32 v{50+c}, v46, v48")
        e(f"  v_mul_f32 v{52+c}, v46, v49")
        e(f"  v_mul_f32 v46, v{40+c}, v{40+c}")
        e(f"  v_fmac_f32 v46, v{42+c}, v{42+c}")
        e(f"  v_rcp_f32 v46, v46")
        e(f"  v_add_f32 v47, -1.0, v{50+c}")
        e(f"  v_mul_f32 v48, v47, v{40+c}")
        e(f"  v_fmac_f32 v48, v{52+c}, v{42+c}")
        e(f"  v_mul_f32 v49, v{52+c}, v{40+c}")
        e(f"  v_fma_f32 v49, -v47, v{42+c}, v49")
        e(f"  v_mul_f32 v{54+c}, v48, v46")
        e(f"  v_mul_f32 v{56+c}, v49, v46")
    for c in range(2):
        e(f"  v_xor_b32 v{58+c}, 0x80000000, v{52+c}")
        e(f"  v_xor_b32 v{60+c}, 0x80000000, v{56+c}")
    def cmul(dr, di, ar_, ai, br, bi, nbi, tr):
        e(f"  v_pk_mul_f32 v[{tr}:{tr+1}], v[{ar_}:{ar_+1}], v[{br}:{br+1}]")
        e(f"  v_pk_mul_f32 v[{tr+2}:{tr+3}], v[{ai}:{ai+1}], v[{br}:{br+1}]")
        e(f"  v_pk_fma_f32 v[{tr}:{tr+1}], v[{ai}:{ai+1}], v[{nbi}:{nbi+1}], v[{tr}:{tr+1}]")
        e(f"  v_pk_fma_f32 v[{tr+2}:{tr+3}], v[{ar_}:{ar_+1}], v[{bi}:{bi+1}], v[{tr+2}:{tr+3}]")
        e(f"  v_mov_b32 v{dr}, v{tr}\n  v_mov_b32 v{dr+1}, v{tr+1}\n  v_mov_b32 v{di}, v{tr+2}\n  v_mov_b32 v{di+1}, v{tr+3}")
    def cneg(d, s):
        e(f"  v_xor_b32 v{d}, 0x80000000, v{s}\n  v_xor_b32 v{d+1}, 0x80000000, v{s+1}")
    for k in range(2):
        e(f"  v_mov_b32 v{8+k}, v{50+k}\n  v_mov_b32 v{10+k}, v{52+k}")
    for it in range(4):
        cneg(12, 10); cmul(8, 10, 8, 10, 8, 10, 12, 20)
    cneg(12, 10)
    for k in range(2):
        e(f"  v_mov_b32 v{14+k}, v{8+k}\n  v_mov_b32 v{16+k}, v{10+k}")
    for it in range(4):
        cneg(18, 16); cmul(14, 16, 14, 16, 14, 16, 18, 20)
    cneg(18, 16)
    e("  s_waitcnt lgkmcnt(0)")
    for k in range(4): e(f"  v_mov_b32 v{24+k}, 0")
    def hstep(bur, bui):
        e(f"  v_pk_fma_f32 v[20:21], v[24:25], v[50:51], v[{bur}:{bur+1}]")
        e(f"  v_pk_fma_f32 v[22:23], v[26:27], v[50:51], v[{bui}:{bui+1}]")
        e(f"  v_pk_fma_f32 v[20:21], v[26:27], v[58:59], v[20:21]")
        e(f"  v_pk_fma_f32 v[26:27], v[24:25], v[52:53], v[22:23]")
        e(f"  v_mov_b32 v24, v20\n  v_mov_b32 v25, v21")
    for i in range(16):
        ur = 64+4*i; ui = 66+4*i
        e(f"  v_pk_mul_f32 v[28:29], v[{ur}:{ur+1}], v[54:55]")
        e(f"  v_pk_mul_f32 v[30:31], v[{ui}:{ui+1}], v[54:55]")
        e(f"  v_pk_fma_f32 v[28:29], v[{ui}:{ui+1}], v[60:61], v[28:29]")
        e(f"  v_pk_fma_f32 v[{ui}:{ui+1}], v[{ur}:{ur+1}], v[56:57], v[30:31]")
        e(f"  v_mov_b32 v{ur}, v28\n  v_mov_b32 v{ur+1}, v29")
        e(f"  ds_write_b64 v62, v[{ur}:{ur+1}] offset:{i*UST}")
        e(f"  ds_write_b64 v62, v[{ui}:{ui+1}] offset:{i*UST+128}")
        hstep(ur, ui)
    e("  v_lshlrev_b32 v39, 8, v34")
    e("  v_lshl_add_u32 v39, v3, 4, v39")
    e(f"  v_add_u32 v39, {EOFF}, v39")
    e(f"  ds_write_b128 v39, v[24:27]")
    e("  s_waitcnt lgkmcnt(0)")
    e("  s_barrier")
    e("  v_lshlrev_b32 v63, 4, v3")
    e(f"  v_add_u32 v63, {EOFF}, v63")
    def seg_reads():
        for i in range(16):
            e(f"  ds_read_b128 v[{64+4*i}:{67+4*i}], v63 offset:{i*256}")
        e("  s_waitcnt lgkmcnt(0)")
    seg_reads()
    def horner(init_zero):
        if init_zero:
            for k in range(4): e(f"  v_mov_b32 v{24+k}, 0")
        for i in range(16):
            if not init_zero:
                e(f"  v_cmp_eq_u32 vcc, {i}, v34")
                e("  s_nop 1")
                for k in range(4): e(f"  v_cndmask_b32 v{28+k}, v{28+k}, v{24+k}, vcc")
            er = 64+4*i
            e(f"  v_pk_fma_f32 v[20:21], v[24:25], v[8:9], v[{er}:{er+1}]")
            e(f"  v_pk_fma_f32 v[22:23], v[26:27], v[8:9], v[{er+2}:{er+3}]")
            e(f"  v_pk_fma_f32 v[20:21], v[26:27], v[12:13], v[20:21]")
            e(f"  v_pk_fma_f32 v[26:27], v[24:25], v[10:11], v[22:23]")
            e(f"  v_mov_b32 v24, v20\n  v_mov_b32 v25, v21")
    horner(True)
    srd(40, P_WS, SZ_AGG, WS_AGG)
    srd(44, P_DBG, 256)
    e("  s_lshl_b32 s74, s58, 8")
    e("  v_lshl_add_u32 v39, v3, 4, s74")
    e("  s_lshl_b32 s75, s57, 13")
    e("  s_lshl_b32 s76, s58, 2")
    Lnp = Lbl.new("K1_nopub")
    e("  s_cmp_lg_u32 s56, 0")
    e(f"  s_cbranch_scc1 {Lnp}")
    e("  s_mov_b64 s[82:83], exec")
    e("  s_mov_b64 exec, 0xffff")
    e("  buffer_store_dwordx4 v[24:27], v39, s[40:43], s75 offen sc1")
    e("  s_waitcnt vmcnt(0)")
    e("  s_mov_b64 exec, 1")
    e("  s_lshl_b32 s77, 1, s57")
    e("  v_mov_b32 v20, s77")
    e("  v_mov_b32 v21, 0")
    e("  buffer_atomic_or v20, v21, s[44:47], s76 offen sc1")
    e("  s_mov_b64 exec, s[82:83]")
    e(f"{Lnp}:")
    stamp(3)

    if os.environ.get("NOTOUCH") is None:
        srd(48, P_W2, 3584*2048)
        e("  s_lshl_b32 s74, s2, 2")
        e("  s_add_u32 s74, s74, s56")
        e("  s_mul_i32 s77, s74, 7168")
        e("  v_min_u32 v101, 55, v1")
        e("  v_lshlrev_b32 v101, 7, v101")
        e("  buffer_load_dword v100, v101, s[48:51], s77 offen")
        srd(48, P_CRE, 1024*2048)
        e("  s_lshl_b32 s77, s74, 11")
        e("  v_lshlrev_b32 v101, 7, v3")
        e("  buffer_load_dword v100, v101, s[48:51], s77 offen")
        srd(48, P_CIM, 1024*2048)
        e("  buffer_load_dword v100, v101, s[48:51], s77 offen")
    T = 64
    srd(48, P_WS, SZ_HMID, WS_HMID)
    e("  s_lshl_b32 s74, s57, 1")
    e("  s_lshr_b32 s77, s56, 1")
    e("  s_add_u32 s74, s74, s77")
    e(f"  s_mul_i32 s74, s74, {56*16384}")
    e("  s_and_b32 s77, s56, 1")
    e("  s_lshl_b32 s77, s77, 13")
    e("  s_add_u32 s74, s74, s77")
    e(f"  v_lshlrev_b32 v{T}, 7, v3")
    e(f"  v_lshl_add_u32 v{T}, v4, 3, v{T}")
    e(f"  v_add_u32 v98, s74, v{T}")
    e("  s_mul_i32 s77, s58, 112")
    for nt in range(7):
        e(f"  s_add_u32 s78, s77, {nt*16}")
        e(f"  s_lshr_b32 s79, s78, 6")
        e(f"  s_lshl_b32 s79, s79, 14")
        e(f"  s_and_b32 s78, s78, 63")
        e(f"  s_lshl_b32 s78, s78, 1")
        e(f"  s_add_u32 s{62+nt}, s79, s78")
    e("  s_mov_b32 s74, 0xbfb8aa3b")
    e("  s_mov_b32 s75, 0xbfb8aa3b")
    e("  s_mov_b32 s78, 1.0")
    e("  s_mov_b32 s79, 1.0")
    def unpk(dst, srcs):
        for i, (src, hi) in enumerate(srcs):
            if hi: e(f"  v_and_b32 v{dst+i}, 0xffff0000, v{src}")
            else:  e(f"  v_lshlrev_b32 v{dst+i}, 16, v{src}")
    for mt in range(4):
        if mt: e(f"  v_add_u32 v98, {16*128}, v98")
        for nt in range(7):
            g = GACC + (nt*4+mt)*4; u = UACC + (nt*4+mt)*4
            e(f"  v_cvt_pk_bf16_f32 v{T}, v{g}, v{g+1}")
            e(f"  v_cvt_pk_bf16_f32 v{T+1}, v{g+2}, v{g+3}")
            unpk(T+2, ((T,0),(T,1),(T+1,0),(T+1,1)))
            e(f"  v_pk_mul_f32 v[{T+6}:{T+7}], v[{T+2}:{T+3}], s[74:75]")
            e(f"  v_pk_mul_f32 v[{T+8}:{T+9}], v[{T+4}:{T+5}], s[74:75]")
            for i in range(4): e(f"  v_exp_f32 v{T+6+i}, v{T+6+i}")
            for i in range(4): e(f"  v_accvgpr_read_b32 v{T+14+i}, a{u+i}")
            e(f"  v_pk_add_f32 v[{T+6}:{T+7}], v[{T+6}:{T+7}], s[78:79]")
            e(f"  v_pk_add_f32 v[{T+8}:{T+9}], v[{T+8}:{T+9}], s[78:79]")
            for i in range(4): e(f"  v_rcp_f32 v{T+6+i}, v{T+6+i}")
            e(f"  v_cvt_pk_bf16_f32 v{T+12}, v{T+14}, v{T+15}")
            e(f"  v_cvt_pk_bf16_f32 v{T+13}, v{T+16}, v{T+17}")
            e(f"  v_pk_mul_f32 v[{T+6}:{T+7}], v[{T+2}:{T+3}], v[{T+6}:{T+7}]")
            e(f"  v_pk_mul_f32 v[{T+8}:{T+9}], v[{T+4}:{T+5}], v[{T+8}:{T+9}]")
            e(f"  v_cvt_pk_bf16_f32 v{T+10}, v{T+6}, v{T+7}")
            e(f"  v_cvt_pk_bf16_f32 v{T+11}, v{T+8}, v{T+9}")
            unpk(T+2, ((T+10,0),(T+10,1),(T+11,0),(T+11,1)))
            unpk(T+6, ((T+12,0),(T+12,1),(T+13,0),(T+13,1)))
            e(f"  v_pk_mul_f32 v[{T+2}:{T+3}], v[{T+2}:{T+3}], v[{T+6}:{T+7}]")
            e(f"  v_pk_mul_f32 v[{T+4}:{T+5}], v[{T+4}:{T+5}], v[{T+8}:{T+9}]")
            t = 90 + ((mt*7+nt) % 4)*2
            e(f"  v_cvt_pk_bf16_f32 v{t}, v{T+2}, v{T+3}")
            e(f"  v_cvt_pk_bf16_f32 v{t+1}, v{T+4}, v{T+5}")
            e(f"  buffer_store_dwordx2 {vr(t,2)}, v98, s[48:51], s{62+nt} offen{WT}")
    stamp(4)

    for k in range(4): e(f"  v_mov_b32 v{24+k}, 0")
    Lnw = Lbl.new("K1_nowait"); Lpoll = Lbl.new("K1_poll"); Lgot = Lbl.new("K1_got")
    e("  s_cmp_eq_u32 s57, 0")
    e(f"  s_cbranch_scc1 {Lnw}")
    e("  s_lshl_b32 s77, 1, s57")
    e("  s_sub_u32 s77, s77, 1")
    e("  s_mov_b32 s78, 0")
    e("  v_mov_b32 v21, 0")
    e(f"{Lpoll}:")
    e("  buffer_load_dword v20, v21, s[44:47], s76 offen sc1")
    e("  s_waitcnt vmcnt(0)")
    e("  v_readfirstlane_b32 s79, v20")
    e("  s_add_u32 s78, s78, 1")
    e("  s_and_b32 s79, s79, s77")
    e("  s_cmp_eq_u32 s79, s77")
    e(f"  s_cbranch_scc1 {Lgot}")
    e("  s_cmp_gt_u32 s78, 0x100000")
    e(f"  s_cbranch_scc1 {Lgot}")
    e("  s_sleep 2")
    e(f"  s_branch {Lpoll}")
    e(f"{Lgot}:")
    Lld = Lbl.new("K1_aggld")
    for i in range(7):
        if i:
            e(f"  s_cmp_le_u32 s57, {i}")
            e(f"  s_cbranch_scc1 {Lld}")
        e(f"  s_mov_b32 s77, {i*8192}")
        e(f"  buffer_load_dwordx4 v[{64+4*i}:{67+4*i}], v39, s[40:43], s77 offen sc1")
    e(f"{Lld}:")
    e("  s_waitcnt vmcnt(0)")
    for i in range(7):
        if i:
            e(f"  s_cmp_le_u32 s57, {i}")
            e(f"  s_cbranch_scc1 {Lnw}")
        er = 64+4*i
        e(f"  v_pk_fma_f32 v[20:21], v[24:25], v[14:15], v[{er}:{er+1}]")
        e(f"  v_pk_fma_f32 v[22:23], v[26:27], v[14:15], v[{er+2}:{er+3}]")
        e(f"  v_pk_fma_f32 v[20:21], v[26:27], v[18:19], v[20:21]")
        e(f"  v_pk_fma_f32 v[26:27], v[24:25], v[16:17], v[22:23]")
        e(f"  v_mov_b32 v24, v20\n  v_mov_b32 v25, v21")
    e(f"{Lnw}:")
    stamp(5)
    seg_reads()
    horner(False)
    u_reads()
    for k in range(4): e(f"  v_mov_b32 v{24+k}, v{28+k}")
    srd(48, P_WS, SZ_H, WS_HHI)
    srd(52, P_WS, SZ_H, WS_HLO)
    e("  s_lshl_b32 s74, s57, 20")
    e("  s_lshr_b32 s77, s58, 1")
    e("  s_lshl_b32 s77, s77, 14")
    e("  s_add_u32 s74, s74, s77")
    e("  s_and_b32 s77, s58, 1")
    e("  s_lshl_b32 s77, s77, 6")
    e("  s_add_u32 s74, s74, s77")
    e("  v_lshrrev_b32 v39, 3, v34")
    e("  v_lshlrev_b32 v39, 19, v39")
    e("  v_and_b32 v28, 7, v34")
    e("  v_lshl_add_u32 v39, v28, 11, v39")
    e("  v_lshl_add_u32 v39, v3, 2, v39")
    e("  v_add_u32 v39, s74, v39")
    e("  s_waitcnt lgkmcnt(0)")
    for i in range(16):
        hstep(64+4*i, 66+4*i)
        o = 240 + (i % 4)*4
        e(f"  v_cvt_pk_bf16_f32 v{o}, v24, v25")
        e(f"  v_cvt_pk_bf16_f32 v{o+2}, -v26, -v27")
        e(f"  v_lshlrev_b32 v28, 16, v{o}")
        e(f"  v_and_b32 v29, 0xffff0000, v{o}")
        e(f"  v_lshlrev_b32 v30, 16, v{o+2}")
        e(f"  v_and_b32 v31, 0xffff0000, v{o+2}")
        e(f"  v_sub_f32 v28, v24, v28")
        e(f"  v_sub_f32 v29, v25, v29")
        e(f"  v_sub_f32_e64 v30, -v26, v30")
        e(f"  v_sub_f32_e64 v31, -v27, v31")
        e(f"  v_cvt_pk_bf16_f32 v{o+1}, v28, v29")
        e(f"  v_cvt_pk_bf16_f32 v{o+3}, v30, v31")
        e(f"  s_mov_b32 s74, 262144")
        e(f"  buffer_store_dword v{o}, v39, s[48:51], 0 offen offset:{i*128}{WT}")
        e(f"  buffer_store_dword v{o+2}, v39, s[48:51], s74 offen offset:{i*128}{WT}")
        e(f"  buffer_store_dword v{o+1}, v39, s[52:55], 0 offen offset:{i*128}{WT}")
        e(f"  buffer_store_dword v{o+3}, v39, s[52:55], s74 offen offset:{i*128}{WT}")
    if PROF: e("  s_waitcnt vmcnt(0)")
    stamp(6)
    stamp_flush(0, 7)
    e(f"{Lend}:")
    e("  s_endpgm")

def kernel2():
    K = "gm_phase2_kernel"
    STAMP["t"] = 6; STAMP["regs"] = [8,9,10,11,12,13,18,19]
    e(f".globl {K}\n.p2align 8\n.type {K},@function\n{K}:")
    Lend = "K2_end"; LB = "K2_typeB"
    e("  s_cmp_ge_u32 s2, 256")
    e(f"  s_cbranch_scc1 {Lend}")
    load_ptrs()
    e("  v_and_b32 v1, 63, v0")
    e("  v_lshrrev_b32 v2, 6, v0")
    e("  s_nop 0")
    e("  v_readfirstlane_b32 s56, v2")
    e("  v_and_b32 v3, 15, v1")
    e("  v_lshrrev_b32 v4, 4, v1")
    e("  s_and_b32 s61, s2, 3")
    e("  s_lshr_b32 s62, s2, 3")
    e("  s_lshl_b32 s57, s61, 2")
    e("  s_lshr_b32 s63, s62, 3")
    e("  s_add_u32 s57, s57, s63")
    e("  s_and_b32 s58, s62, 7")
    e("  s_lshl_b32 s60, s57, 3")
    e("  s_add_u32 s60, s60, s58")
    e("  s_lshr_b32 s87, s56, 1")
    e("  s_and_b32 s88, s56, 1")
    e("  s_lshl_b32 s70, s56, 12")
    e("  s_waitcnt lgkmcnt(0)")
    stamp(0)
    V_RA0, V_RA1 = 20, 21
    e("  v_and_b32 v32, 7, v1")
    e("  v_xor_b32 v32, v32, v4")
    e("  v_lshlrev_b32 v32, 4, v32")
    e("  v_lshl_add_u32 v32, v3, 7, v32")
    e("  s_lshl_b32 s74, s87, 13")
    e(f"  v_add_u32 v{V_RA0}, s74, v32")
    e(f"  v_xor_b32 v{V_RA1}, 64, v{V_RA0}")
    e("  v_mov_b32 v31, v32")
    ACC = 64; FR = 128
    for i in range(64): e(f"  v_mov_b32 v{ACC+i}, 0")
    e("  s_mov_b32 s62, 0\n  s_mov_b32 s63, 0\n  s_mov_b32 s64, 0\n  s_mov_b32 s65, 0\n  s_mov_b32 s71, 0")
    def flat(fl):
        for f in fl:
            if isinstance(f, str): e("  " + f)
            else:
                for x in f: e("  " + x)
    def flat_dma(fl):
        for f in fl:
            if isinstance(f, str):
                e("  " + f)
            else:
                for x in f: e("  " + x)
    e("  s_bitcmp1_b32 s2, 2")
    e(f"  s_cbranch_scc1 {LB}")

    NB = int(os.environ.get("NBA", "4")); ST = 32768; D = 8; NST = 56
    V_DA = 8; V_DW = 12; V_RW = 24
    srd(40, P_WS, SZ_HMID, WS_HMID)
    srd(44, P_W2, 3584*2048)
    e(f"  s_mul_i32 s73, s57, {56*16384}")
    e("  s_lshl_b32 s75, s58, 8")
    for j in range(4):
        e(f"  s_lshl_b32 s74, s56, 8")
        e(f"  s_add_u32 s74, s74, {j*64}")
        e(f"  v_add_u32 v32, s74, v1")
        e(f"  v_lshrrev_b32 v33, 3, v32")
        e(f"  v_and_b32 v34, 7, v32")
        e(f"  v_and_b32 v35, 7, v33")
        e(f"  v_xor_b32 v34, v34, v35")
        e(f"  v_lshlrev_b32 v35, 7, v33")
        e(f"  v_lshl_add_u32 v35, v34, 4, v35")
        e(f"  v_add_u32 v{V_DA+j}, s73, v35")
        e(f"  v_lshrrev_b32 v33, 4, v32")
        e(f"  v_bfe_u32 v34, v32, 1, 3")
        e(f"  v_and_b32 v35, 7, v33")
        e(f"  v_xor_b32 v34, v34, v35")
        e(f"  v_lshlrev_b32 v34, 5, v34")
        e(f"  v_and_b32 v35, 1, v32")
        e(f"  v_lshl_add_u32 v34, v35, 4, v34")
        e(f"  v_and_b32 v35, 0x33, v33")
        e(f"  v_bfe_u32 v36, v33, 2, 1")
        e(f"  v_lshl_or_b32 v35, v36, 3, v35")
        e(f"  v_bfe_u32 v36, v33, 3, 1")
        e(f"  v_lshl_or_b32 v35, v36, 2, v35")
        e(f"  v_lshl_add_u32 v35, v35, 11, v34")
        e(f"  v_add_u32 v{V_DW+j}, s75, v35")
    e("  v_bfe_u32 v32, v1, 5, 1")
    e("  v_lshlrev_b32 v32, 4, v32")
    e("  v_bfe_u32 v33, v1, 4, 1")
    e("  v_lshlrev_b32 v33, 2, v33")
    e("  v_bfe_u32 v34, v1, 2, 2")
    e("  v_add_u32 v33, v33, v34")
    e("  v_add_u32 v32, v32, v33")
    e("  v_lshlrev_b32 v32, 8, v32")
    e("  v_and_b32 v34, 3, v1")
    e("  v_lshl_add_u32 v32, v34, 3, v32")
    e("  v_add_u32 v32, 16384, v32")
    e("  s_lshl_b32 s74, s88, 2")
    for j in range(4):
        e(f"  s_add_u32 s75, s74, {j}")
        e(f"  v_xor_b32 v34, s75, v33")
        e(f"  v_lshl_add_u32 v{V_RW+j}, v34, 5, v32")
    V_PA, V_PB, V_DUM = 28, 29, 30
    PFA = int(os.environ.get("PFA", "0"))
    e("  s_and_b32 s77, s56, 1")
    e("  s_and_b32 s78, s58, 3")
    e("  s_lshl_b32 s78, s78, 5")
    e("  s_lshl_b32 s74, s77, 4")
    e("  s_add_u32 s78, s78, s74")
    e("  v_add_u32 v32, s78, v3")
    e("  v_mul_u32_u24 v33, 7168, v32")
    e("  v_add_u32 v33, s73, v33")
    e("  s_and_b32 s78, s57, 3")
    e("  s_lshl_b32 s78, s78, 4")
    e("  s_lshl_b32 s74, s77, 3")
    e("  s_add_u32 s78, s78, s74")
    e("  v_lshrrev_b32 v34, 1, v3")
    e("  v_add_u32 v34, s78, v34")
    e("  v_lshlrev_b32 v34, 11, v34")
    e("  v_and_b32 v35, 1, v3")
    e("  v_lshl_add_u32 v34, v35, 7, v34")
    e("  s_lshl_b32 s75, s58, 8")
    e("  v_add_u32 v34, s75, v34")
    e("  s_cmp_lt_u32 s56, 2")
    e("  s_cselect_b32 s96, s40, s44")
    e("  s_cselect_b32 s97, s41, s45")
    e("  s_cselect_b32 s98, s42, s46")
    e("  s_mov_b32 s99, 0x00020000")
    e(f"  s_mov_b32 s90, {64*2048}")
    e(f"  s_cselect_b32 s90, 128, s90")
    e("  s_cselect_b64 vcc, -1, 0")
    e(f"  v_cndmask_b32 v{V_PA}, v34, v33, vcc")
    e(f"  s_mul_i32 s89, s90, {NB}")
    def pfA():
        if not PFA: return []
        return [f"buffer_load_dword v{V_DUM}, v{V_PA}, s[96:99], s89 offen", "s_add_u32 s89, s89, s90"]
    def dmaA0():
        f = []
        for j in range(4):
            f.append([f"s_add_u32 s79, s62, s70", f"s_add_u32 m0, s79, {j*1024}"] if j == 0 else [f"s_add_u32 m0, s79, {j*1024}"])
            f.append(f"buffer_load_dwordx4 v{V_DA+j}, s[40:43], s63 offen lds")
        return f
    def dmaA():
        f = []
        for j in range(4):
            f.append(f"s_add_u32 m0, s79, {16384+j*1024}")
            f.append(f"buffer_load_dwordx4 v{V_DW+j}, s[44:47], s64 offen lds")
        f.append(["s_add_u32 s63, s63, 16384", f"s_add_u32 s64, s64, {64*2048}", "s_add_u32 s65, s65, 1"])
        f.append([f"s_add_u32 s62, s62, {ST}", f"s_cmp_ge_u32 s62, {NB*ST}", "s_cselect_b32 s62, 0, s62"])
        f.append([f"s_cmp_ge_u32 s65, {NST}", "s_cselect_b32 s42, 0, s42", "s_cselect_b32 s46, 0, s46"])
        return f
    def a_reads(st, u):
        va = V_RA1 if u else V_RA0
        b = FR + st*32
        r = [f"ds_read_b128 {vr(b+mt*4)}, v{va} offset:{mt*2048}" for mt in range(4)]
        for j in range(4):
            r.append(f"ds_read_b64_tr_b16 {vr(b+16+j*4,2)}, v{V_RW+j} offset:{u*8192}")
            r.append(f"ds_read_b64_tr_b16 {vr(b+18+j*4,2)}, v{V_RW+j} offset:{u*8192+2048}")
        return r
    def a_mfmas(st):
        b = FR + st*32
        return [f"v_mfma_f32_16x16x32_bf16 {vr(ACC+(j*4+mt)*4)}, {vr(b+16+j*4)}, {vr(b+mt*4)}, {vr(ACC+(j*4+mt)*4)}"
                for j in range(4) for mt in range(4)]
    def advA():
        return [["s_add_u32 s71, s71, 1", f"s_cmp_ge_u32 s71, {NB}", f"s_mov_b32 s72, {ST}", f"s_cselect_b32 s72, {-(NB-1)*ST & 0xffffffff}, s72", "s_cselect_b32 s71, 0, s71"]] + \
               [f"v_add_u32 v{x}, s72, v{x}" for x in (V_RA0, V_RA1, V_RW, V_RW+1, V_RW+2, V_RW+3)]
    for s in range(NB-1): flat(dmaA0() + dmaA())
    flat(dmaA0())
    for s in range(PFA): flat(pfA())
    srd(48, P_WS, SZ_G, WS_G)
    e("  s_lshl_b32 s74, s57, 7")
    e("  s_lshl_b32 s75, s87, 6")
    e("  s_add_u32 s74, s74, s75")
    e("  v_add_u32 v32, s74, v3")
    e("  v_lshlrev_b32 v33, 2, v32")
    for mt in range(4):
        e(f"  buffer_load_dword v{40+mt}, v33, s[48:51], 0 offen offset:{mt*64}")
    srd(52, P_WS, SZ_T, WS_T)
    e("  s_lshl_b32 s74, s58, 8")
    e("  s_lshl_b32 s75, s88, 7")
    e("  s_add_u32 s74, s74, s75")
    e("  v_lshlrev_b32 v34, 11, v32")
    e("  v_lshl_add_u32 v34, v4, 3, v34")
    e("  v_add_u32 v34, s74, v34")
    e(f"  s_waitcnt vmcnt({(NB-2)*D + D//2 + 4 + PFA})")
    e("  s_barrier")
    stamp(1)
    flat(a_reads(0, 0))
    e("  s_mov_b32 s84, 0")
    Ll = Lbl.new("K2_A")
    e(f"{Ll}:")
    e("  s_waitcnt lgkmcnt(0)")
    interleave(a_mfmas(0), mix(a_reads(1, 1), dmaA() + pfA()), 0.95)
    e(f"  s_waitcnt vmcnt({(NB-2)*(D + (1 if PFA else 0)) + (1 if PFA else 0)}) lgkmcnt(0)")
    e("  s_barrier")
    interleave(a_mfmas(1), advA() + mix(a_reads(0, 0), dmaA0()), 0.95)
    e("  s_add_u32 s84, s84, 1")
    e(f"  s_cmp_lt_u32 s84, {NST}")
    e(f"  s_cbranch_scc1 {Ll}")
    stamp(2)
    for mt in range(4):
        e(f"  v_sub_f32 v{40+mt}, 1.0, v{40+mt}")
        bf16_round(40+mt, 40+mt, 44)
    for mt in range(4):
        if mt: e(f"  v_add_u32 v34, {16*2048}, v34")
        for j in range(4):
            a = ACC + (j*4+mt)*4
            e(f"  v_cvt_pk_bf16_f32 v44, v{a}, v{a+1}")
            e(f"  v_cvt_pk_bf16_f32 v45, v{a+2}, v{a+3}")
            for i, (src, hi) in enumerate(((44,0),(44,1),(45,0),(45,1))):
                if hi: e(f"  v_and_b32 v{46+i}, 0xffff0000, v{src}")
                else:  e(f"  v_lshlrev_b32 v{46+i}, 16, v{src}")
            for i in range(4): e(f"  v_mul_f32 v{46+i}, v{46+i}, v{40+mt}")
            t = 50 + (j % 4)*2
            e(f"  v_cvt_pk_bf16_f32 v{t}, v46, v47")
            e(f"  v_cvt_pk_bf16_f32 v{t+1}, v48, v49")
            e(f"  buffer_store_dwordx2 {vr(t,2)}, v34, s[52:55], 0 offen offset:{j*32} sc0 sc1")
    srd(48, P_DBG, 256)
    e("  s_lshr_b32 s74, s60, 1")
    e("  s_lshl_b32 s74, s74, 2")
    e("  s_and_b32 s75, s60, 1")
    e("  s_lshl_b32 s75, 1, s75")
    e("  s_waitcnt vmcnt(0)")
    e("  s_barrier")
    e("  s_cmp_lg_u32 s56, 0")
    e(f"  s_cbranch_scc1 K2_A_done")
    e("  s_mov_b64 exec, 1")
    e("  v_mov_b32 v20, s75")
    e("  v_mov_b32 v21, 0")
    e("  buffer_atomic_or v20, v21, s[48:51], s74 offen sc1")
    e("  s_mov_b64 exec, -1")
    e("K2_A_done:")
    stamp(3)
    stamp_flush(1, 4)
    e(f"  s_branch {Lend}")

    e(f"{LB}:")
    NB = 3; ST = 49152; D = 12; NST = 32
    V_DA = 8; V_DW = 12; V_RW0, V_RW1 = 24, 25
    srd(40, P_WS, SZ_H, WS_HHI)
    srd(48, P_WS, SZ_H, WS_HLO)
    srd(44, P_CRE, 1024*2048)
    e("  s_lshl_b32 s73, s57, 19")
    e("  s_lshl_b32 s75, s58, 18")
    for j in range(4):
        e(f"  s_lshl_b32 s74, s56, 8")
        e(f"  s_add_u32 s74, s74, {j*64}")
        e(f"  v_add_u32 v32, s74, v1")
        e(f"  v_lshrrev_b32 v33, 3, v32")
        e(f"  v_and_b32 v34, 7, v32")
        e(f"  v_and_b32 v35, 7, v33")
        e(f"  v_xor_b32 v34, v34, v35")
        e(f"  v_lshlrev_b32 v34, 4, v34")
        e(f"  v_lshl_add_u32 v35, v33, 7, v34")
        e(f"  v_add_u32 v{V_DA+j}, s73, v35")
        e(f"  v_lshl_add_u32 v35, v33, 11, v34")
        e(f"  v_add_u32 v{V_DW+j}, s75, v35")
    e("  s_lshl_b32 s74, s88, 13")
    e("  s_add_u32 s74, s74, 32768")
    e(f"  v_add_u32 v{V_RW0}, s74, v31")
    e(f"  v_xor_b32 v{V_RW1}, 64, v{V_RW0}")
    V_PA, V_PB, V_DUM = 28, 29, 30
    e("  s_and_b32 s77, s56, 1")
    e("  s_lshl_b32 s77, s77, 6")
    e("  v_add_u32 v32, s77, v1")
    e("  v_lshlrev_b32 v33, 12, v32")
    e(f"  v_add_u32 v{V_PA}, s73, v33")
    e("  v_lshlrev_b32 v33, 11, v32")
    e(f"  v_add_u32 v{V_PB}, s75, v33")
    e("  s_cmp_lt_u32 s56, 2")
    e("  s_cselect_b32 s96, s40, s48")
    e("  s_cselect_b32 s97, s41, s49")
    e("  s_mov_b32 s98, s42")
    e("  s_mov_b32 s99, 0x00020000")
    srd(92, P_CRE, 1024*2048)
    PFB = 0
    e(f"  s_mov_b32 s89, {NB*128}")
    e(f"  s_mov_b32 s90, {NB*128}")
    e(f"  s_mov_b32 s91, {NB}")
    def pfB():
        return [f"buffer_load_dword v{V_DUM}, v{V_PA}, s[96:99], s89 offen",
                f"buffer_load_dword v{V_DUM}, v{V_PB}, s[92:95], s90 offen",
                ["s_add_u32 s89, s89, 128", "s_add_u32 s90, s90, 128", "s_add_u32 s91, s91, 1"],
                ["s_cmp_eq_u32 s91, 16", f"s_cselect_b32 s92, s{P_CIM}, s92", f"s_cselect_b32 s93, s{P_CIM+1}, s93", "s_cselect_b32 s90, 0, s90"]]
    def EARLY_B():
        srd(52, P_WS, SZ_G, WS_G)
        e("  s_lshl_b32 s74, s57, 7")
        e("  s_lshl_b32 s77, s87, 6")
        e("  s_add_u32 s74, s74, s77")
        e("  v_add_u32 v32, s74, v3")
        e("  v_lshlrev_b32 v33, 2, v32")
        for mt in range(4):
            e(f"  buffer_load_dword v{40+mt}, v33, s[52:55], 0 offen offset:{mt*64}")
        srd(52, P_DSK, 2048)
        e("  s_lshl_b32 s74, s58, 8")
        e("  s_lshl_b32 s77, s88, 7")
        e("  s_add_u32 s74, s74, s77")
        e("  v_lshl_add_u32 v35, v4, 3, s74")
        for j in range(4):
            e(f"  buffer_load_dwordx2 v[{44+2*j}:{45+2*j}], v35, s[52:55], 0 offen offset:{j*32}")
        e("  v_lshl_add_u32 v36, v32, 11, v35")
        srd(52, P_X, 2048*2048)
        for mt in range(4):
            for j in range(4):
                r = 224 + (mt*4+j)*2
                e(f"  s_mov_b32 s74, {mt*16*2048}")
                e(f"  buffer_load_dwordx2 v[{r}:{r+1}], v36, s[52:55], s74 offen offset:{j*32}")
    def dmaB0():
        f = []
        for j in range(4):
            f.append([f"s_add_u32 s79, s62, s70", f"s_add_u32 m0, s79, {j*1024}"] if j == 0 else [f"s_add_u32 m0, s79, {j*1024}"])
            f.append(f"buffer_load_dwordx4 v{V_DA+j}, s[40:43], s63 offen lds")
        for j in range(2):
            f.append(f"s_add_u32 m0, s79, {16384+j*1024}")
            f.append(f"buffer_load_dwordx4 v{V_DA+j}, s[48:51], s63 offen lds")
        return f
    def dmaB():
        f = []
        for j in range(2, 4):
            f.append(f"s_add_u32 m0, s79, {16384+j*1024}")
            f.append(f"buffer_load_dwordx4 v{V_DA+j}, s[48:51], s63 offen lds")
        for j in range(4):
            f.append(f"s_add_u32 m0, s79, {32768+j*1024}")
            f.append(f"buffer_load_dwordx4 v{V_DW+j}, s[44:47], s64 offen lds")
        f.append(["s_add_u32 s63, s63, 16384", "s_add_u32 s64, s64, 128", "s_add_u32 s65, s65, 1"])
        f.append([f"s_add_u32 s62, s62, {ST}", f"s_cmp_ge_u32 s62, {NB*ST}", "s_cselect_b32 s62, 0, s62"])
        f.append(["s_cmp_eq_u32 s65, 16", f"s_cselect_b32 s44, s{P_CIM}, s44", f"s_cselect_b32 s45, s{P_CIM+1}, s45", "s_cselect_b32 s64, 0, s64"])
        f.append([f"s_cmp_ge_u32 s65, {NST}", "s_cselect_b32 s42, 0, s42", "s_cselect_b32 s46, 0, s46", "s_cselect_b32 s50, 0, s50"])
        return f
    def b_reads(st, u):
        va = V_RA1 if u else V_RA0; vw = V_RW1 if u else V_RW0
        b = FR + st*48
        r = [f"ds_read_b128 {vr(b+32+j*4)}, v{vw} offset:{j*2048}" for j in range(4)]
        r += [f"ds_read_b128 {vr(b+mt*4)}, v{va} offset:{mt*2048}" for mt in range(4)]
        r += [f"ds_read_b128 {vr(b+16+mt*4)}, v{va} offset:{16384+mt*2048}" for mt in range(4)]
        return r
    def b_mfmas(st):
        b = FR + st*48
        m = []
        for hl in range(2):
            for j in range(4):
                for mt in range(4):
                    acc = vr(ACC+(j*4+mt)*4)
                    m.append(f"v_mfma_f32_16x16x32_bf16 {acc}, {vr(b+32+j*4)}, {vr(b+hl*16+mt*4)}, {acc}")
        return m
    def advB():
        return [["s_add_u32 s71, s71, 1", f"s_cmp_ge_u32 s71, {NB}", f"s_mov_b32 s72, {ST}", f"s_cselect_b32 s72, {-(NB-1)*ST & 0xffffffff}, s72", "s_cselect_b32 s71, 0, s71"]] + \
               [f"v_add_u32 v{x}, s72, v{x}" for x in (V_RA0, V_RA1, V_RW0, V_RW1)]
    for s in range(NB-1): flat(dmaB0() + dmaB())
    flat(dmaB0())
    EARLY_B()
    e(f"  s_waitcnt vmcnt({(NB-2)*D + D//2 + 24})")
    e("  s_barrier")
    stamp(1)
    flat(b_reads(0, 0))
    e("  s_mov_b32 s84, 0")
    Ll = Lbl.new("K2_B")
    e(f"{Ll}:")
    e("  s_waitcnt lgkmcnt(0)")
    interleave(b_mfmas(0), mix(b_reads(1, 1), dmaB()), 0.9)
    e(f"  s_waitcnt vmcnt({(NB-2)*D}) lgkmcnt(0)")
    e("  s_barrier")
    interleave(b_mfmas(1), advB() + mix(b_reads(0, 0), dmaB0()), 0.9)
    e("  s_add_u32 s84, s84, 1")
    e(f"  s_cmp_lt_u32 s84, {NST}")
    e(f"  s_cbranch_scc1 {Ll}")
    stamp(2)
    for j in range(4):
        for i in range(4):
            src = 44+2*j+(i >> 1)
            if i & 1: e(f"  v_and_b32 v{192+j*4+i}, 0xffff0000, v{src}")
            else:     e(f"  v_lshlrev_b32 v{192+j*4+i}, 16, v{src}")
    for mt in range(4):
        for j in range(4):
            a = ACC + (j*4+mt)*4; xr = 224 + (mt*4+j)*2
            for i in range(4):
                src = xr + (i >> 1)
                if i & 1: e(f"  v_and_b32 v{52+i}, 0xffff0000, v{src}")
                else:     e(f"  v_lshlrev_b32 v{52+i}, 16, v{src}")
            e(f"  v_pk_mul_f32 v[52:53], v[52:53], v[{192+j*4}:{193+j*4}]")
            e(f"  v_pk_mul_f32 v[54:55], v[54:55], v[{194+j*4}:{195+j*4}]")
            e(f"  v_cvt_pk_bf16_f32 v56, v52, v53")
            e(f"  v_cvt_pk_bf16_f32 v57, v54, v55")
            for i, (src, hi) in enumerate(((56,0),(56,1),(57,0),(57,1))):
                if hi: e(f"  v_and_b32 v{52+i}, 0xffff0000, v{src}")
                else:  e(f"  v_lshlrev_b32 v{52+i}, 16, v{src}")
            for i in range(4): e(f"  v_fma_f32 v{a+i}, 2.0, v{a+i}, v{52+i}")
            for i in range(4): e(f"  v_mul_f32 v{a+i}, v{a+i}, v{40+mt}")
    srd(48, P_DBG, 256)
    srd(52, P_WS, SZ_T, WS_T)
    e("  s_lshr_b32 s74, s60, 1")
    e("  s_lshl_b32 s74, s74, 2")
    e("  s_and_b32 s75, s60, 1")
    e("  s_lshl_b32 s75, 1, s75")
    e("  s_mov_b32 s78, 0")
    e("  v_mov_b32 v37, 0")
    Lp = Lbl.new("K2_poll"); Lg = Lbl.new("K2_got")
    e(f"{Lp}:")
    e("  buffer_load_dword v38, v37, s[48:51], s74 offen sc1")
    e("  s_waitcnt vmcnt(0)")
    e("  v_readfirstlane_b32 s79, v38")
    e("  s_add_u32 s78, s78, 1")
    e("  s_and_b32 s79, s79, s75")
    e(f"  s_cbranch_scc1 {Lg}")
    e("  s_cmp_gt_u32 s78, 0x100000")
    e(f"  s_cbranch_scc1 {Lg}")
    e("  s_sleep 1")
    e(f"  s_branch {Lp}")
    e(f"{Lg}:")
    stamp(3)
    for mt in range(4):
        for j in range(4):
            r = 160 + (mt*4+j)*2
            e(f"  s_mov_b32 s74, {mt*16*2048}")
            e(f"  buffer_load_dwordx2 v[{r}:{r+1}], v36, s[52:55], s74 offen offset:{j*32} sc0 sc1")
    srd(48, P_OUT, 2048*1024*4)
    e("  v_lshlrev_b32 v36, 1, v36")
    for mt in range(4):
        for j in range(4):
            a = ACC + (j*4+mt)*4; tr = 160 + (mt*4+j)*2
            e(f"  s_waitcnt vmcnt({15 - (mt*4+j) + (mt*4+j)})") if False else None
            e(f"  s_waitcnt vmcnt({15})") if (mt*4+j) == 0 else None
            for i in range(4):
                src = tr + (i >> 1)
                if i & 1: e(f"  v_and_b32 v{56+i}, 0xffff0000, v{src}")
                else:     e(f"  v_lshlrev_b32 v{56+i}, 16, v{src}")
            e(f"  v_pk_add_f32 v[{a}:{a+1}], v[{a}:{a+1}], v[56:57]")
            e(f"  v_pk_add_f32 v[{a+2}:{a+3}], v[{a+2}:{a+3}], v[58:59]")
            e(f"  s_mov_b32 s74, {mt*16*4096}")
            e(f"  buffer_store_dwordx4 {vr(a)}, v36, s[48:51], s74 offen offset:{j*64}{WT2}")
            if (mt*4+j) < 15: e(f"  s_waitcnt vmcnt(15)")
    if PROF: e("  s_waitcnt vmcnt(0)")
    stamp(4)
    stamp_flush(1, 5)
    e(f"{Lend}:")
    e("  s_endpgm")

def desc(name, vgpr, accum):
    e(f".amdhsa_kernel {name}")
    e(f"  .amdhsa_next_free_vgpr {vgpr}")
    e("  .amdhsa_next_free_sgpr 102")
    e(f"  .amdhsa_accum_offset {accum}")
    e("  .amdhsa_group_segment_fixed_size 0")
    e("  .amdhsa_kernarg_size 136")
    e("  .amdhsa_user_sgpr_count 2")
    e("  .amdhsa_user_sgpr_kernarg_segment_ptr 1")
    e("  .amdhsa_system_sgpr_workgroup_id_x 1")
    e(".end_amdhsa_kernel")

def main():
    hdr = open("gated_mix__ssm_conv_s5__glu_gated_swiglu__prompt.s.ref").read().split("\n")
    for l in hdr:
        if l.startswith("; @launch"): break
        e(l)
    e("; @launch kernel=gm_phase1_kernel grid=(256,1,1) block=(256,1,1) lds=139264")
    e("; @launch kernel=gm_phase2_kernel grid=(256,1,1) block=(256,1,1) lds=163840")
    e('.amdgcn_target "amdgcn-amd-amdhsa--gfx950"')
    e(".text")
    kernel1()
    kernel2()
    e('.section .rodata,"a"')
    e(".p2align 6")
    desc("gm_phase1_kernel", 512, 256)
    e(".p2align 6")
    desc("gm_phase2_kernel", 256, 256)
    open(sys.argv[1] if len(sys.argv) > 1 else "gated_mix__ssm_conv_s5__glu_gated_swiglu__prompt.s", "w").write("\n".join(OUT) + "\n")

main()
```

```python
import sys

OUT = []
def e(s=""):
    if OUT and " lds" in s and s.strip().startswith("buffer_load") and " m0," in OUT[-1]:
        OUT.append("  s_nop 0")
    OUT.append(s)

class Lbl:
    n = 0
    @staticmethod
    def new(p="L"):
        Lbl.n += 1
        return f"{p}_{Lbl.n}"

WS_HMID = 0x0;        SZ_HMID = 2048*3584*2
WS_HHI  = 0x1000000;  SZ_H = 2048*2048*2
WS_HLO  = 0x1800000
WS_T    = 0x2000000;  SZ_T = 2048*1024*2
WS_G    = 0x2400000;  SZ_G = 2048*4
WS_AGG  = 0x2410000;  SZ_AGG = 8*512*16

P_X, P_LRE, P_LIM, P_BRE, P_BIM, P_CRE, P_CIM, P_LDT = 4, 6, 8, 10, 12, 14, 16, 18
P_DSK, P_BX, P_W1, P_W3, P_W2, P_GW, P_OUT, P_DBG = 20, 22, 24, 26, 28, 30, 32, 34
P_WS = 36

def srd(d, p, nbytes, off=0):
    if off:
        e(f"  s_add_u32 s{d}, s{p}, 0x{off:x}")
        e(f"  s_addc_u32 s{d+1}, s{p+1}, 0")
    else:
        e(f"  s_mov_b32 s{d}, s{p}")
        e(f"  s_mov_b32 s{d+1}, s{p+1}")
    e(f"  s_mov_b32 s{d+2}, 0x{nbytes:x}")
    e(f"  s_mov_b32 s{d+3}, 0x00020000")

def load_ptrs():
    e("  s_load_dwordx16 s[4:19], s[0:1], 0")
    e("  s_load_dwordx16 s[20:35], s[0:1], 64")
    e("  s_load_dwordx2 s[36:37], s[0:1], 128")

def vr(b, n=4): return f"v[{b}:{b+n-1}]"
def ar(b, n=4): return f"a[{b}:{b+n-1}]"

def interleave(mfmas, fillers, frac=0.8):
    M = len(mfmas); F = len(fillers)
    span = max(1, int(M*frac))
    done = 0
    for i, m in enumerate(mfmas):
        e("  " + m)
        want = min(F, ((i+1)*F + span - 1)//span)
        while done < want:
            f = fillers[done]; done += 1
            if isinstance(f, str): e("  " + f)
            else:
                for x in f: e("  " + x)
    while done < F:
        f = fillers[done]; done += 1
        if isinstance(f, str): e("  " + f)
        else:
            for x in f: e("  " + x)

PROF = len(sys.argv) > 2 and sys.argv[2] == "prof"
import os
EXP = os.environ.get("EXP", "")
WT = os.environ.get("WT", "")
WT2 = os.environ.get("WT2", "")
STAMP = dict(t=14, regs=[16,17,20,21,22,23,28,29,32,33])
def stamp(i):
    if not PROF: return
    t = STAMP["t"]
    e(f"  s_memrealtime s[{t}:{t+1}]" if os.environ.get("RT") else f"  s_memtime s[{t}:{t+1}]")
    e("  s_waitcnt lgkmcnt(0)")
    e(f"  s_mov_b32 s{STAMP['regs'][i]}, s{t}")
def stamp_flush(kid, n):
    if not PROF: return
    srd(48, P_WS, 0x100000, 0x3000000 + kid*0x10000)
    t = STAMP["t"]
    e(f"  s_lshl_b32 s{t}, s2, 8")
    e(f"  s_lshl_b32 s{t+1}, s56, 6")
    e(f"  s_add_u32 s{t}, s{t}, s{t+1}")
    e("  v_mov_b32 v251, 0")
    for i in range(n):
        e(f"  v_mov_b32 v250, s{STAMP['regs'][i]}")
        e(f"  buffer_store_dword v250, v251, s[48:51], s{t} offen offset:{i*4}")
        e("  s_waitcnt vmcnt(0)")

def bf16_round(dst, src, tmp):
    e(f"  v_cvt_pk_bf16_f32 v{tmp}, v{src}, v{src}")
    e(f"  v_lshlrev_b32 v{dst}, 16, v{tmp}")

def mix(reads, dma):
    groups = []
    i = 0
    while i < len(dma):
        f = dma[i]
        txt = f if isinstance(f, str) else " ".join(f)
        if " m0," in txt and i + 1 < len(dma):
            groups.append([dma[i], dma[i+1]]); i += 2
        else:
            groups.append([dma[i]]); i += 1
    out = []
    n = len(reads); g = len(groups)
    gi = 0
    for k, r in enumerate(reads):
        out.append(r)
        want = ((k+1)*g)//n
        while gi < want:
            out += groups[gi]; gi += 1
    while gi < g:
        out += groups[gi]; gi += 1
    return out

def flat(fl):
    for f in fl:
        if isinstance(f, str): e("  " + f)
        else:
            for x in f: e("  " + x)

def kernel1():
    K = "gm_phase1_kernel"
    e(f".globl {K}\n.p2align 8\n.type {K},@function\n{K}:")
    Lend = "K1_end"
    e("  s_cmp_ge_u32 s2, 256")
    e(f"  s_cbranch_scc1 {Lend}")
    load_ptrs()
    e("  v_and_b32 v1, 63, v0")
    e("  v_lshrrev_b32 v2, 6, v0")
    e("  s_nop 0")
    e("  v_readfirstlane_b32 s56, v2")
    e("  v_and_b32 v3, 15, v1")
    e("  v_lshrrev_b32 v4, 4, v1")
    e("  s_lshr_b32 s57, s2, 3")
    e("  s_and_b32 s57, s57, 7")
    e("  s_and_b32 s58, s2, 7")
    e("  s_lshl_b32 s58, s58, 2")
    e("  s_lshr_b32 s59, s2, 6")
    e("  s_add_u32 s58, s58, s59")
    NBUF = 4; STG = 34816; D = 9
    OFF_W = 16384; OFF_S = 30720
    V_DA = 8
    V_DW = 12
    V_DS = 16
    V_RA = 17; V_RW = 18; V_RS = 19
    AFR = 32
    SACC = 64
    GACC = 128
    UACC = 0
    FR = 112
    TMP = 20
    e("  s_lshl_b32 s73, s57, 19")
    for j in range(4):
        e(f"  s_lshl_b32 s74, s56, 8")
        e(f"  s_add_u32 s74, s74, {j*64}")
        e(f"  v_add_u32 v20, s74, v1")
        e(f"  v_lshrrev_b32 v21, 2, v20")
        e(f"  v_and_b32 v22, 3, v20")
        e(f"  v_bfe_u32 v23, v21, 3, 1")
        e(f"  v_mul_u32_u24 v23, 3, v23")
        e(f"  v_xor_b32 v22, v22, v23")
        e(f"  v_lshlrev_b32 v21, 11, v21")
        e(f"  v_lshl_add_u32 v21, v22, 4, v21")
        e(f"  v_add_u32 v{V_DA+j}, s73, v21")
    e("  s_mul_i32 s75, s58, 224")
    e("  s_and_b32 s76, s56, 1")
    e("  s_lshl_b32 s76, s76, 2")
    e("  s_lshr_b32 s77, s56, 1")
    e("  s_mul_i32 s77, s77, 7168")
    e(f"  s_add_u32 s77, s77, {OFF_W}")
    for j in range(4):
        e(f"  s_add_u32 s74, s76, {j}")
        e(f"  s_min_u32 s74, s74, 6")
        e(f"  s_lshl_b32 s78, s74, 10")
        e(f"  s_add_u32 s{66+j}, s78, s77")
        e(f"  s_lshl_b32 s74, s74, 6")
        e(f"  v_add_u32 v20, s74, v1")
        e(f"  v_mul_u32_u24 v21, 4682, v20")
        e(f"  v_lshrrev_b32 v21, 16, v21")
        e(f"  v_mul_u32_u24 v22, 14, v21")
        e(f"  v_sub_u32 v22, v20, v22")
        e(f"  v_and_b32 v23, 0x13, v21")
        e(f"  v_bfe_u32 v24, v21, 2, 1")
        e(f"  v_lshl_or_b32 v23, v24, 3, v23")
        e(f"  v_bfe_u32 v24, v21, 3, 1")
        e(f"  v_lshl_or_b32 v23, v24, 2, v23")
        e(f"  v_mul_u32_u24 v23, 7168, v23")
        e(f"  v_lshl_add_u32 v23, v22, 4, v23")
        e(f"  v_add_u32 v{V_DW+j}, s75, v23")
    e("  s_lshl_b32 s74, s56, 6")
    e("  v_add_u32 v20, s74, v1")
    e("  v_lshrrev_b32 v21, 2, v20")
    e("  v_and_b32 v22, 3, v20")
    e("  v_bfe_u32 v23, v21, 3, 1")
    e("  v_mul_u32_u24 v23, 3, v23")
    e("  v_xor_b32 v22, v22, v23")
    e("  v_and_b32 v21, 31, v21")
    e("  v_lshlrev_b32 v21, 11, v21")
    e("  v_lshl_add_u32 v21, v22, 4, v21")
    e("  s_lshl_b32 s74, s58, 16")
    e(f"  v_add_u32 v{V_DS}, s74, v21")
    e("  s_lshl_b32 s70, s56, 12")
    e("  s_lshl_b32 s80, s56, 10")
    e(f"  s_add_u32 s80, s80, {OFF_S}")
    e("  v_bfe_u32 v20, v1, 3, 1")
    e("  v_mul_u32_u24 v20, 3, v20")
    e("  v_xor_b32 v20, v20, v4")
    e("  v_lshlrev_b32 v20, 4, v20")
    e("  v_lshl_add_u32 v20, v3, 6, v20")
    e(f"  v_add_u32 v{V_RA}, s70, v20")
    e(f"  v_add_u32 v{V_RS}, {OFF_S}, v20")
    e("  v_bfe_u32 v20, v1, 5, 1")
    e("  v_lshlrev_b32 v20, 4, v20")
    e("  v_bfe_u32 v21, v1, 4, 1")
    e("  v_lshl_add_u32 v20, v21, 2, v20")
    e("  v_bfe_u32 v21, v1, 2, 2")
    e("  v_add_u32 v20, v20, v21")
    e("  v_mul_u32_u24 v20, 224, v20")
    e("  v_and_b32 v21, 3, v1")
    e("  v_lshl_add_u32 v20, v21, 3, v20")
    e(f"  v_add_u32 v{V_RW}, {OFF_W}, v20")
    for r in (62, 63, 64, 65, 71): e(f"  s_mov_b32 s{r}, 0")
    e("  s_waitcnt lgkmcnt(0)")
    stamp(0)
    srd(40, P_X, 2048*2048)
    e("  s_cmp_lt_u32 s56, 2")
    e(f"  s_cselect_b32 s44, s{P_W1}, s{P_W3}")
    e(f"  s_cselect_b32 s45, s{P_W1+1}, s{P_W3+1}")
    e(f"  s_mov_b32 s46, 0x{1024*7168:x}")
    e("  s_mov_b32 s47, 0x00020000")
    e(f"  s_cselect_b32 s96, s{P_BRE}, s{P_BIM}")
    e(f"  s_cselect_b32 s97, s{P_BRE+1}, s{P_BIM+1}")
    e(f"  s_mov_b32 s98, 0x{1024*2048:x}")
    e("  s_mov_b32 s99, 0x00020000")

    def dma_stage():
        f = []
        for j in range(4):
            f.append([f"s_add_u32 s79, s62, s70", f"s_add_u32 m0, s79, {j*1024}"] if j == 0 else [f"s_add_u32 m0, s79, {j*1024}"])
            f.append(f"buffer_load_dwordx4 v{V_DA+j}, s[40:43], s63 offen lds")
        for j in range(4):
            f.append(f"s_add_u32 m0, s62, s{66+j}")
            f.append(f"buffer_load_dwordx4 v{V_DW+j}, s[44:47], s64 offen lds")
        f.append(f"s_add_u32 m0, s62, s80")
        f.append(f"buffer_load_dwordx4 v{V_DS}, s[96:99], s63 offen lds")
        f.append(["s_add_u32 s63, s63, 64", f"s_add_u32 s64, s64, {32*7168}", "s_add_u32 s65, s65, 1"])
        f.append([f"s_add_u32 s62, s62, {STG}", f"s_cmp_ge_u32 s62, {NBUF*STG}", "s_cselect_b32 s62, 0, s62"])
        f.append(["s_cmp_ge_u32 s65, 32", "s_cselect_b32 s42, 0, s42", "s_cselect_b32 s46, 0, s46", "s_cselect_b32 s98, 0, s98"])
        return f
    flat(dma_stage())
    srd(48, P_GW, 2048)
    e("  s_lshl_b32 s60, s2, 3")
    e("  s_lshl_b32 s61, s56, 1")
    e("  s_add_u32 s60, s60, s61")
    e("  s_lshl_b32 s61, s60, 11")
    e("  v_lshlrev_b32 v5, 5, v1")
    e("  buffer_load_dwordx4 v[20:23], v5, s[48:51], 0 offen")
    e("  buffer_load_dwordx4 v[24:27], v5, s[48:51], 0 offen offset:16")
    e("  buffer_load_dwordx4 v[240:243], v5, s[40:43], s61 offen")
    e("  buffer_load_dwordx4 v[244:247], v5, s[40:43], s61 offen offset:16")
    e("  buffer_load_dwordx4 v[248:251], v5, s[40:43], s61 offen offset:2048")
    e("  buffer_load_dwordx4 v[252:255], v5, s[40:43], s61 offen offset:2064")
    e("  s_lshl_b32 s74, s58, 6")
    e("  v_lshl_add_u32 v28, v3, 2, s74")
    srd(48, P_LRE, 2048)
    e("  buffer_load_dword v29, v28, s[48:51], 0 offen")
    srd(48, P_LIM, 2048)
    e("  buffer_load_dword v30, v28, s[48:51], 0 offen")
    srd(48, P_LDT, 2048)
    e("  buffer_load_dword v31, v28, s[48:51], 0 offen")
    NT1 = 0
    if os.environ.get("TOUCH1") is not None:
        NT1 = 5
        e("  s_lshl_b32 s74, s2, 2")
        e("  s_add_u32 s74, s74, s56")
        e("  s_mul_i32 s77, s74, 7168")
        e("  v_min_u32 v6, 55, v1")
        e("  v_lshlrev_b32 v6, 7, v6")
        srd(48, P_W1, 1024*7168)
        e("  buffer_load_dword v7, v6, s[48:51], s77 offen")
        srd(48, P_W3, 1024*7168)
        e("  buffer_load_dword v7, v6, s[48:51], s77 offen")
        e("  s_lshl_b32 s77, s74, 12")
        e("  v_and_b32 v6, 31, v1")
        e("  v_lshlrev_b32 v6, 7, v6")
        e("  buffer_load_dword v7, v6, s[40:43], s77 offen")
        e("  s_lshl_b32 s77, s74, 11")
        e("  v_lshlrev_b32 v6, 7, v3")
        srd(48, P_BRE, 1024*2048)
        e("  buffer_load_dword v7, v6, s[48:51], s77 offen")
        srd(48, P_BIM, 1024*2048)
        e("  buffer_load_dword v7, v6, s[48:51], s77 offen")
    zer = []
    for i in range(112):
        zer.append(f"v_mov_b32 v{GACC+i}, 0")
        zer.append(f"v_accvgpr_write_b32 a{UACC+i}, 0")
    for i in range(64): zer.append(f"v_mov_b32 v{SACC+i}, 0")
    dl = []
    for s_ in range(NBUF-1): dl += dma_stage()
    interleave(zer, dl, 1.0)

    def g_compute():
        for row in range(2):
            e(f"  v_mov_b32 v{28+row}, 0")
            for d in range(8):
                xv = 240 + row*8 + d; gv = 20 + d
                e(f"  v_lshlrev_b32 v32, 16, v{xv}")
                e(f"  v_lshlrev_b32 v33, 16, v{gv}")
                e(f"  v_and_b32 v34, 0xffff0000, v{xv}")
                e(f"  v_and_b32 v35, 0xffff0000, v{gv}")
                e(f"  v_pk_mul_f32 v[32:33], v[32:33], v[32:33] op_sel:[0,1] op_sel_hi:[0,1]") if False else None
                e(f"  v_mul_f32 v32, v32, v33")
                e(f"  v_mul_f32 v34, v34, v35")
                e(f"  v_cvt_pk_bf16_f32 v32, v32, v34")
                e(f"  v_lshlrev_b32 v33, 16, v32")
                e(f"  v_and_b32 v34, 0xffff0000, v32")
                e(f"  v_add_f32 v{28+row}, v{28+row}, v33")
                e(f"  v_add_f32 v{28+row}, v{28+row}, v34")
        for off in (0x041F, 0x081F, 0x101F, 0x201F, 0x401F):
            e(f"  ds_swizzle_b32 v30, v28 offset:0x{off:04X}")
            e(f"  ds_swizzle_b32 v31, v29 offset:0x{off:04X}")
            e("  s_waitcnt lgkmcnt(0)")
            e("  v_add_f32 v28, v28, v30")
            e("  v_add_f32 v29, v29, v31")
        e("  s_nop 1")
        e("  v_readlane_b32 s81, v28, 32")
        e("  v_readlane_b32 s82, v29, 32")
        e("  s_nop 1")
        e("  v_add_f32 v28, s81, v28")
        e("  v_add_f32 v29, s82, v29")
        srd(48, P_WS, SZ_G, WS_G)
        for row in range(2):
            v = 28 + row
            bf16_round(v, v, 32)
            e(f"  v_mul_f32 v33, 0xbfb8aa3b, v{v}")
            e(f"  v_exp_f32 v33, v33")
            e("  s_nop 0")
            e(f"  v_add_f32 v33, 1.0, v33")
            e(f"  v_rcp_f32 v33, v33")
            e("  s_nop 0")
            bf16_round(v, 33, 32)
        e("  s_lshl_b32 s61, s60, 2")
        e("  v_mov_b32 v33, 0")
        e("  s_mov_b64 s[82:83], exec")
        e("  s_mov_b64 exec, 1")
        e("  buffer_store_dword v28, v33, s[48:51], s61 offen")
        e("  buffer_store_dword v29, v33, s[48:51], s61 offen offset:4")
        e("  s_mov_b64 exec, s[82:83]")

    def f_act(st, mt): return AFR + st*16 + mt*4
    def f_w(st, nt): return FR + st*72 + nt*4
    def reads(st):
        r = []
        for mt in range(4):
            r.append(f"ds_read_b128 {vr(f_act(st,mt))}, v{V_RA} offset:{mt*1024}")
        for nt in range(14):
            base = (nt % 7)*32 + (7168 if nt >= 7 else 0)
            b = f_w(st, nt)
            r.append(f"ds_read_b64_tr_b16 {ar(b,2)}, v{V_RW} offset:{base}")
            r.append(f"ds_read_b64_tr_b16 {ar(b+2,2)}, v{V_RW} offset:{base+8*224}")
        for q in range(4):
            r.append(f"ds_read_b128 {ar(f_w(st,14+q))}, v{V_RS} offset:{q*1024}")
        return r
    def mfmas(st):
        m = []
        for nt in range(18):
            for mt in range(4):
                if nt < 7: acc = vr(GACC + (nt*4+mt)*4)
                elif nt < 14: acc = ar(UACC + ((nt-7)*4+mt)*4)
                else: acc = vr(SACC + ((nt-14)*4+mt)*4)
                m.append(f"v_mfma_f32_16x16x32_bf16 {acc}, {ar(f_w(st,nt))}, {vr(f_act(st,mt))}, {acc}")
        return m
    def adv_read():
        return [["s_add_u32 s71, s71, 1", f"s_cmp_ge_u32 s71, {NBUF}", f"s_mov_b32 s72, {STG}", f"s_cselect_b32 s72, {-(NBUF-1)*STG & 0xffffffff}, s72", "s_cselect_b32 s71, 0, s71"],
                f"v_add_u32 v{V_RA}, s72, v{V_RA}", f"v_add_u32 v{V_RW}, s72, v{V_RW}", f"v_add_u32 v{V_RS}, s72, v{V_RS}"]
    e(f"  s_waitcnt vmcnt({(NBUF-1)*D + 9 + NT1})")
    e("  s_barrier")
    stamp(1)
    flat(reads(0))
    e("  s_mov_b32 s84, 0")
    Lloop = Lbl.new("K1_main")
    e(f"{Lloop}:")
    for half in range(2):
        e(f"  s_waitcnt vmcnt({(NBUF-2)*D}) lgkmcnt(0)")
        if "nobar" not in EXP: e("  s_barrier")
        fl = adv_read() + mix(reads(1-half), dma_stage())
        interleave(mfmas(half), fl, 0.95)
    e("  s_add_u32 s84, s84, 1")
    e("  s_cmp_lt_u32 s84, 16")
    e(f"  s_cbranch_scc1 {Lloop}")
    e("  s_waitcnt vmcnt(0) lgkmcnt(0)")
    e("  s_barrier")
    stamp(2)
    e("  v_mov_b32 v36, v29\n  v_mov_b32 v37, v30\n  v_mov_b32 v38, v31")
    g_compute()

    UST = 272; EOFF = 69632
    e("  s_lshl_b32 s74, s56, 6")
    e("  v_add_u32 v20, s74, v3")
    e(f"  v_mul_u32_u24 v20, {UST}, v20")
    e("  v_lshl_add_u32 v20, v4, 4, v20")
    for p in range(2):
        for j in range(2):
            for mt in range(4):
                e(f"  ds_write_b128 v20, {vr(SACC + p*32 + (j*4+mt)*4)} offset:{mt*16*UST + j*64 + p*128}")
    e("  s_lshl_b32 s74, s56, 2")
    e("  v_add_u32 v34, s74, v4")
    e("  s_lshl_b32 s74, s58, 6")
    e("  v_lshl_add_u32 v35, v3, 2, s74")
    e("  s_waitcnt lgkmcnt(0)")
    e("  s_barrier")
    e(f"  v_lshlrev_b32 v62, 4, v34")
    e(f"  v_mul_u32_u24 v62, {UST}, v62")
    e("  v_lshl_add_u32 v62, v3, 3, v62")
    def u_reads():
        for i in range(16):
            e(f"  ds_read_b64 v[{64+4*i}:{65+4*i}], v62 offset:{i*UST}")
            e(f"  ds_read_b64 v[{66+4*i}:{67+4*i}], v62 offset:{i*UST+128}")
    u_reads()
    for (src, dst) in ((36, 40), (37, 42), (38, 44)):
        e(f"  v_lshlrev_b32 v{dst}, 16, v{src}")
        e(f"  v_and_b32 v{dst+1}, 0xffff0000, v{src}")
    for c in range(2):
        e(f"  v_mul_f32 v{44+c}, 0x3fb8aa3b, v{44+c}")
        e(f"  v_exp_f32 v{44+c}, v{44+c}")
        e("  s_nop 0")
        bf16_round(44+c, 44+c, 32)
        e(f"  v_mul_f32 v46, v{44+c}, v{40+c}")
        e(f"  v_mul_f32 v47, v{44+c}, v{42+c}")
        e(f"  v_mul_f32 v46, 0x3fb8aa3b, v46")
        e(f"  v_exp_f32 v46, v46")
        e(f"  v_mul_f32 v47, 0.15915494, v47")
        e(f"  v_fract_f32 v47, v47")
        e(f"  v_cos_f32 v48, v47")
        e(f"  v_sin_f32 v49, v47")
        e("  s_nop 0")
        e(f"  v_mul_f32 v{50+c}, v46, v48")
        e(f"  v_mul_f32 v{52+c}, v46, v49")
        e(f"  v_mul_f32 v46, v{40+c}, v{40+c}")
        e(f"  v_fmac_f32 v46, v{42+c}, v{42+c}")
        e(f"  v_rcp_f32 v46, v46")
        e(f"  v_add_f32 v47, -1.0, v{50+c}")
        e(f"  v_mul_f32 v48, v47, v{40+c}")
        e(f"  v_fmac_f32 v48, v{52+c}, v{42+c}")
        e(f"  v_mul_f32 v49, v{52+c}, v{40+c}")
        e(f"  v_fma_f32 v49, -v47, v{42+c}, v49")
        e(f"  v_mul_f32 v{54+c}, v48, v46")
        e(f"  v_mul_f32 v{56+c}, v49, v46")
    for c in range(2):
        e(f"  v_xor_b32 v{58+c}, 0x80000000, v{52+c}")
        e(f"  v_xor_b32 v{60+c}, 0x80000000, v{56+c}")
    def cmul(dr, di, ar_, ai, br, bi, nbi, tr):
        e(f"  v_pk_mul_f32 v[{tr}:{tr+1}], v[{ar_}:{ar_+1}], v[{br}:{br+1}]")
        e(f"  v_pk_mul_f32 v[{tr+2}:{tr+3}], v[{ai}:{ai+1}], v[{br}:{br+1}]")
        e(f"  v_pk_fma_f32 v[{tr}:{tr+1}], v[{ai}:{ai+1}], v[{nbi}:{nbi+1}], v[{tr}:{tr+1}]")
        e(f"  v_pk_fma_f32 v[{tr+2}:{tr+3}], v[{ar_}:{ar_+1}], v[{bi}:{bi+1}], v[{tr+2}:{tr+3}]")
        e(f"  v_mov_b32 v{dr}, v{tr}\n  v_mov_b32 v{dr+1}, v{tr+1}\n  v_mov_b32 v{di}, v{tr+2}\n  v_mov_b32 v{di+1}, v{tr+3}")
    def cneg(d, s):
        e(f"  v_xor_b32 v{d}, 0x80000000, v{s}\n  v_xor_b32 v{d+1}, 0x80000000, v{s+1}")
    for k in range(2):
        e(f"  v_mov_b32 v{8+k}, v{50+k}\n  v_mov_b32 v{10+k}, v{52+k}")
    for it in range(4):
        cneg(12, 10); cmul(8, 10, 8, 10, 8, 10, 12, 20)
    cneg(12, 10)
    for k in range(2):
        e(f"  v_mov_b32 v{14+k}, v{8+k}\n  v_mov_b32 v{16+k}, v{10+k}")
    for it in range(4):
        cneg(18, 16); cmul(14, 16, 14, 16, 14, 16, 18, 20)
    cneg(18, 16)
    e("  s_waitcnt lgkmcnt(0)")
    for k in range(4): e(f"  v_mov_b32 v{24+k}, 0")
    def hstep(bur, bui):
        e(f"  v_pk_fma_f32 v[20:21], v[24:25], v[50:51], v[{bur}:{bur+1}]")
        e(f"  v_pk_fma_f32 v[22:23], v[26:27], v[50:51], v[{bui}:{bui+1}]")
        e(f"  v_pk_fma_f32 v[20:21], v[26:27], v[58:59], v[20:21]")
        e(f"  v_pk_fma_f32 v[26:27], v[24:25], v[52:53], v[22:23]")
        e(f"  v_mov_b32 v24, v20\n  v_mov_b32 v25, v21")
    for i in range(16):
        ur = 64+4*i; ui = 66+4*i
        e(f"  v_pk_mul_f32 v[28:29], v[{ur}:{ur+1}], v[54:55]")
        e(f"  v_pk_mul_f32 v[30:31], v[{ui}:{ui+1}], v[54:55]")
        e(f"  v_pk_fma_f32 v[28:29], v[{ui}:{ui+1}], v[60:61], v[28:29]")
        e(f"  v_pk_fma_f32 v[{ui}:{ui+1}], v[{ur}:{ur+1}], v[56:57], v[30:31]")
        e(f"  v_mov_b32 v{ur}, v28\n  v_mov_b32 v{ur+1}, v29")
        e(f"  ds_write_b64 v62, v[{ur}:{ur+1}] offset:{i*UST}")
        e(f"  ds_write_b64 v62, v[{ui}:{ui+1}] offset:{i*UST+128}")
        hstep(ur, ui)
    e("  v_lshlrev_b32 v39, 8, v34")
    e("  v_lshl_add_u32 v39, v3, 4, v39")
    e(f"  v_add_u32 v39, {EOFF}, v39")
    e(f"  ds_write_b128 v39, v[24:27]")
    e("  s_waitcnt lgkmcnt(0)")
    e("  s_barrier")
    e("  v_lshlrev_b32 v63, 4, v3")
    e(f"  v_add_u32 v63, {EOFF}, v63")
    def seg_reads():
        for i in range(16):
            e(f"  ds_read_b128 v[{64+4*i}:{67+4*i}], v63 offset:{i*256}")
        e("  s_waitcnt lgkmcnt(0)")
    seg_reads()
    def horner(init_zero):
        if init_zero:
            for k in range(4): e(f"  v_mov_b32 v{24+k}, 0")
        for i in range(16):
            if not init_zero:
                e(f"  v_cmp_eq_u32 vcc, {i}, v34")
                e("  s_nop 1")
                for k in range(4): e(f"  v_cndmask_b32 v{28+k}, v{28+k}, v{24+k}, vcc")
            er = 64+4*i
            e(f"  v_pk_fma_f32 v[20:21], v[24:25], v[8:9], v[{er}:{er+1}]")
            e(f"  v_pk_fma_f32 v[22:23], v[26:27], v[8:9], v[{er+2}:{er+3}]")
            e(f"  v_pk_fma_f32 v[20:21], v[26:27], v[12:13], v[20:21]")
            e(f"  v_pk_fma_f32 v[26:27], v[24:25], v[10:11], v[22:23]")
            e(f"  v_mov_b32 v24, v20\n  v_mov_b32 v25, v21")
    horner(True)
    srd(40, P_WS, SZ_AGG, WS_AGG)
    srd(44, P_DBG, 256)
    e("  s_lshl_b32 s74, s58, 8")
    e("  v_lshl_add_u32 v39, v3, 4, s74")
    e("  s_lshl_b32 s75, s57, 13")
    e("  s_lshl_b32 s76, s58, 2")
    Lnp = Lbl.new("K1_nopub")
    e("  s_cmp_lg_u32 s56, 0")
    e(f"  s_cbranch_scc1 {Lnp}")
    e("  s_mov_b64 s[82:83], exec")
    e("  s_mov_b64 exec, 0xffff")
    e("  buffer_store_dwordx4 v[24:27], v39, s[40:43], s75 offen sc1")
    e("  s_waitcnt vmcnt(0)")
    e("  s_mov_b64 exec, 1")
    e("  s_lshl_b32 s77, 1, s57")
    e("  v_mov_b32 v20, s77")
    e("  v_mov_b32 v21, 0")
    e("  buffer_atomic_or v20, v21, s[44:47], s76 offen sc1")
    e("  s_mov_b64 exec, s[82:83]")
    e(f"{Lnp}:")
    stamp(3)

    if os.environ.get("NOTOUCH") is None:
        srd(48, P_W2, 3584*2048)
        e("  s_lshl_b32 s74, s2, 2")
        e("  s_add_u32 s74, s74, s56")
        e("  s_mul_i32 s77, s74, 7168")
        e("  v_min_u32 v101, 55, v1")
        e("  v_lshlrev_b32 v101, 7, v101")
        e("  buffer_load_dword v100, v101, s[48:51], s77 offen")
        srd(48, P_CRE, 1024*2048)
        e("  s_lshl_b32 s77, s74, 11")
        e("  v_lshlrev_b32 v101, 7, v3")
        e("  buffer_load_dword v100, v101, s[48:51], s77 offen")
        srd(48, P_CIM, 1024*2048)
        e("  buffer_load_dword v100, v101, s[48:51], s77 offen")
    T = 64
    srd(48, P_WS, SZ_HMID, WS_HMID)
    e("  s_lshl_b32 s74, s57, 1")
    e("  s_lshr_b32 s77, s56, 1")
    e("  s_add_u32 s74, s74, s77")
    e(f"  s_mul_i32 s74, s74, {56*16384}")
    e("  s_and_b32 s77, s56, 1")
    e("  s_lshl_b32 s77, s77, 13")
    e("  s_add_u32 s74, s74, s77")
    e(f"  v_lshlrev_b32 v{T}, 7, v3")
    e(f"  v_lshl_add_u32 v{T}, v4, 3, v{T}")
    e(f"  v_add_u32 v98, s74, v{T}")
    e("  s_mul_i32 s77, s58, 112")
    for nt in range(7):
        e(f"  s_add_u32 s78, s77, {nt*16}")
        e(f"  s_lshr_b32 s79, s78, 6")
        e(f"  s_lshl_b32 s79, s79, 14")
        e(f"  s_and_b32 s78, s78, 63")
        e(f"  s_lshl_b32 s78, s78, 1")
        e(f"  s_add_u32 s{62+nt}, s79, s78")
    e("  s_mov_b32 s74, 0xbfb8aa3b")
    e("  s_mov_b32 s75, 0xbfb8aa3b")
    e("  s_mov_b32 s78, 1.0")
    e("  s_mov_b32 s79, 1.0")
    def unpk(dst, srcs):
        for i, (src, hi) in enumerate(srcs):
            if hi: e(f"  v_and_b32 v{dst+i}, 0xffff0000, v{src}")
            else:  e(f"  v_lshlrev_b32 v{dst+i}, 16, v{src}")
    for mt in range(4):
        if mt: e(f"  v_add_u32 v98, {16*128}, v98")
        for nt in range(7):
            g = GACC + (nt*4+mt)*4; u = UACC + (nt*4+mt)*4
            e(f"  v_cvt_pk_bf16_f32 v{T}, v{g}, v{g+1}")
            e(f"  v_cvt_pk_bf16_f32 v{T+1}, v{g+2}, v{g+3}")
            unpk(T+2, ((T,0),(T,1),(T+1,0),(T+1,1)))
            e(f"  v_pk_mul_f32 v[{T+6}:{T+7}], v[{T+2}:{T+3}], s[74:75]")
            e(f"  v_pk_mul_f32 v[{T+8}:{T+9}], v[{T+4}:{T+5}], s[74:75]")
            for i in range(4): e(f"  v_exp_f32 v{T+6+i}, v{T+6+i}")
            for i in range(4): e(f"  v_accvgpr_read_b32 v{T+14+i}, a{u+i}")
            e(f"  v_pk_add_f32 v[{T+6}:{T+7}], v[{T+6}:{T+7}], s[78:79]")
            e(f"  v_pk_add_f32 v[{T+8}:{T+9}], v[{T+8}:{T+9}], s[78:79]")
            for i in range(4): e(f"  v_rcp_f32 v{T+6+i}, v{T+6+i}")
            e(f"  v_cvt_pk_bf16_f32 v{T+12}, v{T+14}, v{T+15}")
            e(f"  v_cvt_pk_bf16_f32 v{T+13}, v{T+16}, v{T+17}")
            e(f"  v_pk_mul_f32 v[{T+6}:{T+7}], v[{T+2}:{T+3}], v[{T+6}:{T+7}]")
            e(f"  v_pk_mul_f32 v[{T+8}:{T+9}], v[{T+4}:{T+5}], v[{T+8}:{T+9}]")
            e(f"  v_cvt_pk_bf16_f32 v{T+10}, v{T+6}, v{T+7}")
            e(f"  v_cvt_pk_bf16_f32 v{T+11}, v{T+8}, v{T+9}")
            unpk(T+2, ((T+10,0),(T+10,1),(T+11,0),(T+11,1)))
            unpk(T+6, ((T+12,0),(T+12,1),(T+13,0),(T+13,1)))
            e(f"  v_pk_mul_f32 v[{T+2}:{T+3}], v[{T+2}:{T+3}], v[{T+6}:{T+7}]")
            e(f"  v_pk_mul_f32 v[{T+4}:{T+5}], v[{T+4}:{T+5}], v[{T+8}:{T+9}]")
            t = 90 + ((mt*7+nt) % 4)*2
            e(f"  v_cvt_pk_bf16_f32 v{t}, v{T+2}, v{T+3}")
            e(f"  v_cvt_pk_bf16_f32 v{t+1}, v{T+4}, v{T+5}")
            e(f"  buffer_store_dwordx2 {vr(t,2)}, v98, s[48:51], s{62+nt} offen{WT}")
    stamp(4)

    for k in range(4): e(f"  v_mov_b32 v{24+k}, 0")
    Lnw = Lbl.new("K1_nowait"); Lpoll = Lbl.new("K1_poll"); Lgot = Lbl.new("K1_got")
    e("  s_cmp_eq_u32 s57, 0")
    e(f"  s_cbranch_scc1 {Lnw}")
    e("  s_lshl_b32 s77, 1, s57")
    e("  s_sub_u32 s77, s77, 1")
    e("  s_mov_b32 s78, 0")
    e("  v_mov_b32 v21, 0")
    e(f"{Lpoll}:")
    e("  buffer_load_dword v20, v21, s[44:47], s76 offen sc1")
    e("  s_waitcnt vmcnt(0)")
    e("  v_readfirstlane_b32 s79, v20")
    e("  s_add_u32 s78, s78, 1")
    e("  s_and_b32 s79, s79, s77")
    e("  s_cmp_eq_u32 s79, s77")
    e(f"  s_cbranch_scc1 {Lgot}")
    e("  s_cmp_gt_u32 s78, 0x100000")
    e(f"  s_cbranch_scc1 {Lgot}")
    e("  s_sleep 2")
    e(f"  s_branch {Lpoll}")
    e(f"{Lgot}:")
    Lld = Lbl.new("K1_aggld")
    for i in range(7):
        if i:
            e(f"  s_cmp_le_u32 s57, {i}")
            e(f"  s_cbranch_scc1 {Lld}")
        e(f"  s_mov_b32 s77, {i*8192}")
        e(f"  buffer_load_dwordx4 v[{64+4*i}:{67+4*i}], v39, s[40:43], s77 offen sc1")
    e(f"{Lld}:")
    e("  s_waitcnt vmcnt(0)")
    for i in range(7):
        if i:
            e(f"  s_cmp_le_u32 s57, {i}")
            e(f"  s_cbranch_scc1 {Lnw}")
        er = 64+4*i
        e(f"  v_pk_fma_f32 v[20:21], v[24:25], v[14:15], v[{er}:{er+1}]")
        e(f"  v_pk_fma_f32 v[22:23], v[26:27], v[14:15], v[{er+2}:{er+3}]")
        e(f"  v_pk_fma_f32 v[20:21], v[26:27], v[18:19], v[20:21]")
        e(f"  v_pk_fma_f32 v[26:27], v[24:25], v[16:17], v[22:23]")
        e(f"  v_mov_b32 v24, v20\n  v_mov_b32 v25, v21")
    e(f"{Lnw}:")
    stamp(5)
    seg_reads()
    horner(False)
    u_reads()
    for k in range(4): e(f"  v_mov_b32 v{24+k}, v{28+k}")
    srd(48, P_WS, SZ_H, WS_HHI)
    srd(52, P_WS, SZ_H, WS_HLO)
    e("  s_lshl_b32 s74, s57, 20")
    e("  s_lshr_b32 s77, s58, 1")
    e("  s_lshl_b32 s77, s77, 14")
    e("  s_add_u32 s74, s74, s77")
    e("  s_and_b32 s77, s58, 1")
    e("  s_lshl_b32 s77, s77, 6")
    e("  s_add_u32 s74, s74, s77")
    e("  v_lshrrev_b32 v39, 3, v34")
    e("  v_lshlrev_b32 v39, 19, v39")
    e("  v_and_b32 v28, 7, v34")
    e("  v_lshl_add_u32 v39, v28, 11, v39")
    e("  v_lshl_add_u32 v39, v3, 2, v39")
    e("  v_add_u32 v39, s74, v39")
    e("  s_waitcnt lgkmcnt(0)")
    for i in range(16):
        hstep(64+4*i, 66+4*i)
        o = 240 + (i % 4)*4
        e(f"  v_cvt_pk_bf16_f32 v{o}, v24, v25")
        e(f"  v_cvt_pk_bf16_f32 v{o+2}, -v26, -v27")
        e(f"  v_lshlrev_b32 v28, 16, v{o}")
        e(f"  v_and_b32 v29, 0xffff0000, v{o}")
        e(f"  v_lshlrev_b32 v30, 16, v{o+2}")
        e(f"  v_and_b32 v31, 0xffff0000, v{o+2}")
        e(f"  v_sub_f32 v28, v24, v28")
        e(f"  v_sub_f32 v29, v25, v29")
        e(f"  v_sub_f32_e64 v30, -v26, v30")
        e(f"  v_sub_f32_e64 v31, -v27, v31")
        e(f"  v_cvt_pk_bf16_f32 v{o+1}, v28, v29")
        e(f"  v_cvt_pk_bf16_f32 v{o+3}, v30, v31")
        e(f"  s_mov_b32 s74, 262144")
        e(f"  buffer_store_dword v{o}, v39, s[48:51], 0 offen offset:{i*128}{WT}")
        e(f"  buffer_store_dword v{o+2}, v39, s[48:51], s74 offen offset:{i*128}{WT}")
        e(f"  buffer_store_dword v{o+1}, v39, s[52:55], 0 offen offset:{i*128}{WT}")
        e(f"  buffer_store_dword v{o+3}, v39, s[52:55], s74 offen offset:{i*128}{WT}")
    if PROF: e("  s_waitcnt vmcnt(0)")
    stamp(6)
    stamp_flush(0, 7)
    e(f"{Lend}:")
    e("  s_endpgm")

def kernel2():
    K = "gm_phase2_kernel"
    STAMP["t"] = 6; STAMP["regs"] = [8,9,10,11,12,13,18,19]
    e(f".globl {K}\n.p2align 8\n.type {K},@function\n{K}:")
    Lend = "K2_end"; LB = "K2_typeB"
    e("  s_cmp_ge_u32 s2, 256")
    e(f"  s_cbranch_scc1 {Lend}")
    load_ptrs()
    e("  v_and_b32 v1, 63, v0")
    e("  v_lshrrev_b32 v2, 6, v0")
    e("  s_nop 0")
    e("  v_readfirstlane_b32 s56, v2")
    e("  v_and_b32 v3, 15, v1")
    e("  v_lshrrev_b32 v4, 4, v1")
    e("  s_and_b32 s61, s2, 3")
    e("  s_lshr_b32 s62, s2, 3")
    e("  s_lshl_b32 s57, s61, 2")
    e("  s_lshr_b32 s63, s62, 3")
    e("  s_add_u32 s57, s57, s63")
    e("  s_and_b32 s58, s62, 7")
    e("  s_lshl_b32 s60, s57, 3")
    e("  s_add_u32 s60, s60, s58")
    e("  s_lshr_b32 s87, s56, 1")
    e("  s_and_b32 s88, s56, 1")
    e("  s_lshl_b32 s70, s56, 12")
    e("  s_waitcnt lgkmcnt(0)")
    stamp(0)
    V_RA0, V_RA1 = 20, 21
    e("  v_and_b32 v32, 7, v1")
    e("  v_xor_b32 v32, v32, v4")
    e("  v_lshlrev_b32 v32, 4, v32")
    e("  v_lshl_add_u32 v32, v3, 7, v32")
    e("  s_lshl_b32 s74, s87, 13")
    e(f"  v_add_u32 v{V_RA0}, s74, v32")
    e(f"  v_xor_b32 v{V_RA1}, 64, v{V_RA0}")
    e("  v_mov_b32 v31, v32")
    ACC = 64; FR = 128
    for i in range(64): e(f"  v_mov_b32 v{ACC+i}, 0")
    e("  s_mov_b32 s62, 0\n  s_mov_b32 s63, 0\n  s_mov_b32 s64, 0\n  s_mov_b32 s65, 0\n  s_mov_b32 s71, 0")
    def flat(fl):
        for f in fl:
            if isinstance(f, str): e("  " + f)
            else:
                for x in f: e("  " + x)
    def flat_dma(fl):
        for f in fl:
            if isinstance(f, str):
                e("  " + f)
            else:
                for x in f: e("  " + x)
    e("  s_bitcmp1_b32 s2, 2")
    e(f"  s_cbranch_scc1 {LB}")

    NB = int(os.environ.get("NBA", "4")); ST = 32768; D = 8; NST = 56
    V_DA = 8; V_DW = 12; V_RW = 24
    srd(40, P_WS, SZ_HMID, WS_HMID)
    srd(44, P_W2, 3584*2048)
    e(f"  s_mul_i32 s73, s57, {56*16384}")
    e("  s_lshl_b32 s75, s58, 8")
    for j in range(4):
        e(f"  s_lshl_b32 s74, s56, 8")
        e(f"  s_add_u32 s74, s74, {j*64}")
        e(f"  v_add_u32 v32, s74, v1")
        e(f"  v_lshrrev_b32 v33, 3, v32")
        e(f"  v_and_b32 v34, 7, v32")
        e(f"  v_and_b32 v35, 7, v33")
        e(f"  v_xor_b32 v34, v34, v35")
        e(f"  v_lshlrev_b32 v35, 7, v33")
        e(f"  v_lshl_add_u32 v35, v34, 4, v35")
        e(f"  v_add_u32 v{V_DA+j}, s73, v35")
        e(f"  v_lshrrev_b32 v33, 4, v32")
        e(f"  v_bfe_u32 v34, v32, 1, 3")
        e(f"  v_and_b32 v35, 7, v33")
        e(f"  v_xor_b32 v34, v34, v35")
        e(f"  v_lshlrev_b32 v34, 5, v34")
        e(f"  v_and_b32 v35, 1, v32")
        e(f"  v_lshl_add_u32 v34, v35, 4, v34")
        e(f"  v_and_b32 v35, 0x33, v33")
        e(f"  v_bfe_u32 v36, v33, 2, 1")
        e(f"  v_lshl_or_b32 v35, v36, 3, v35")
        e(f"  v_bfe_u32 v36, v33, 3, 1")
        e(f"  v_lshl_or_b32 v35, v36, 2, v35")
        e(f"  v_lshl_add_u32 v35, v35, 11, v34")
        e(f"  v_add_u32 v{V_DW+j}, s75, v35")
    e("  v_bfe_u32 v32, v1, 5, 1")
    e("  v_lshlrev_b32 v32, 4, v32")
    e("  v_bfe_u32 v33, v1, 4, 1")
    e("  v_lshlrev_b32 v33, 2, v33")
    e("  v_bfe_u32 v34, v1, 2, 2")
    e("  v_add_u32 v33, v33, v34")
    e("  v_add_u32 v32, v32, v33")
    e("  v_lshlrev_b32 v32, 8, v32")
    e("  v_and_b32 v34, 3, v1")
    e("  v_lshl_add_u32 v32, v34, 3, v32")
    e("  v_add_u32 v32, 16384, v32")
    e("  s_lshl_b32 s74, s88, 2")
    for j in range(4):
        e(f"  s_add_u32 s75, s74, {j}")
        e(f"  v_xor_b32 v34, s75, v33")
        e(f"  v_lshl_add_u32 v{V_RW+j}, v34, 5, v32")
    V_PA, V_PB, V_DUM = 28, 29, 30
    PFA = int(os.environ.get("PFA", "0"))
    e("  s_and_b32 s77, s56, 1")
    e("  s_and_b32 s78, s58, 3")
    e("  s_lshl_b32 s78, s78, 5")
    e("  s_lshl_b32 s74, s77, 4")
    e("  s_add_u32 s78, s78, s74")
    e("  v_add_u32 v32, s78, v3")
    e("  v_mul_u32_u24 v33, 7168, v32")
    e("  v_add_u32 v33, s73, v33")
    e("  s_and_b32 s78, s57, 3")
    e("  s_lshl_b32 s78, s78, 4")
    e("  s_lshl_b32 s74, s77, 3")
    e("  s_add_u32 s78, s78, s74")
    e("  v_lshrrev_b32 v34, 1, v3")
    e("  v_add_u32 v34, s78, v34")
    e("  v_lshlrev_b32 v34, 11, v34")
    e("  v_and_b32 v35, 1, v3")
    e("  v_lshl_add_u32 v34, v35, 7, v34")
    e("  s_lshl_b32 s75, s58, 8")
    e("  v_add_u32 v34, s75, v34")
    e("  s_cmp_lt_u32 s56, 2")
    e("  s_cselect_b32 s96, s40, s44")
    e("  s_cselect_b32 s97, s41, s45")
    e("  s_cselect_b32 s98, s42, s46")
    e("  s_mov_b32 s99, 0x00020000")
    e(f"  s_mov_b32 s90, {64*2048}")
    e(f"  s_cselect_b32 s90, 128, s90")
    e("  s_cselect_b64 vcc, -1, 0")
    e(f"  v_cndmask_b32 v{V_PA}, v34, v33, vcc")
    e(f"  s_mul_i32 s89, s90, {NB}")
    def pfA():
        if not PFA: return []
        return [f"buffer_load_dword v{V_DUM}, v{V_PA}, s[96:99], s89 offen", "s_add_u32 s89, s89, s90"]
    def dmaA0():
        f = []
        for j in range(4):
            f.append([f"s_add_u32 s79, s62, s70", f"s_add_u32 m0, s79, {j*1024}"] if j == 0 else [f"s_add_u32 m0, s79, {j*1024}"])
            f.append(f"buffer_load_dwordx4 v{V_DA+j}, s[40:43], s63 offen lds")
        return f
    def dmaA():
        f = []
        for j in range(4):
            f.append(f"s_add_u32 m0, s79, {16384+j*1024}")
            f.append(f"buffer_load_dwordx4 v{V_DW+j}, s[44:47], s64 offen lds")
        f.append(["s_add_u32 s63, s63, 16384", f"s_add_u32 s64, s64, {64*2048}", "s_add_u32 s65, s65, 1"])
        f.append([f"s_add_u32 s62, s62, {ST}", f"s_cmp_ge_u32 s62, {NB*ST}", "s_cselect_b32 s62, 0, s62"])
        f.append([f"s_cmp_ge_u32 s65, {NST}", "s_cselect_b32 s42, 0, s42", "s_cselect_b32 s46, 0, s46"])
        return f
    def a_reads(st, u):
        va = V_RA1 if u else V_RA0
        b = FR + st*32
        r = [f"ds_read_b128 {vr(b+mt*4)}, v{va} offset:{mt*2048}" for mt in range(4)]
        for j in range(4):
            r.append(f"ds_read_b64_tr_b16 {vr(b+16+j*4,2)}, v{V_RW+j} offset:{u*8192}")
            r.append(f"ds_read_b64_tr_b16 {vr(b+18+j*4,2)}, v{V_RW+j} offset:{u*8192+2048}")
        return r
    def a_mfmas(st):
        b = FR + st*32
        return [f"v_mfma_f32_16x16x32_bf16 {vr(ACC+(j*4+mt)*4)}, {vr(b+16+j*4)}, {vr(b+mt*4)}, {vr(ACC+(j*4+mt)*4)}"
                for j in range(4) for mt in range(4)]
    def advA():
        return [["s_add_u32 s71, s71, 1", f"s_cmp_ge_u32 s71, {NB}", f"s_mov_b32 s72, {ST}", f"s_cselect_b32 s72, {-(NB-1)*ST & 0xffffffff}, s72", "s_cselect_b32 s71, 0, s71"]] + \
               [f"v_add_u32 v{x}, s72, v{x}" for x in (V_RA0, V_RA1, V_RW, V_RW+1, V_RW+2, V_RW+3)]
    for s in range(NB-1): flat(dmaA0() + dmaA())
    flat(dmaA0())
    for s in range(PFA): flat(pfA())
    srd(48, P_WS, SZ_G, WS_G)
    e("  s_lshl_b32 s74, s57, 7")
    e("  s_lshl_b32 s75, s87, 6")
    e("  s_add_u32 s74, s74, s75")
    e("  v_add_u32 v32, s74, v3")
    e("  v_lshlrev_b32 v33, 2, v32")
    for mt in range(4):
        e(f"  buffer_load_dword v{40+mt}, v33, s[48:51], 0 offen offset:{mt*64}")
    srd(52, P_WS, SZ_T, WS_T)
    e("  s_lshl_b32 s74, s58, 8")
    e("  s_lshl_b32 s75, s88, 7")
    e("  s_add_u32 s74, s74, s75")
    e("  v_lshlrev_b32 v34, 11, v32")
    e("  v_lshl_add_u32 v34, v4, 3, v34")
    e("  v_add_u32 v34, s74, v34")
    e(f"  s_waitcnt vmcnt({(NB-2)*D + D//2 + 4 + PFA})")
    e("  s_barrier")
    stamp(1)
    flat(a_reads(0, 0))
    e("  s_mov_b32 s84, 0")
    Ll = Lbl.new("K2_A")
    e(f"{Ll}:")
    e("  s_waitcnt lgkmcnt(0)")
    interleave(a_mfmas(0), mix(a_reads(1, 1), dmaA() + pfA()), 0.95)
    e(f"  s_waitcnt vmcnt({(NB-2)*(D + (1 if PFA else 0)) + (1 if PFA else 0)}) lgkmcnt(0)")
    e("  s_barrier")
    interleave(a_mfmas(1), advA() + mix(a_reads(0, 0), dmaA0()), 0.95)
    e("  s_add_u32 s84, s84, 1")
    e(f"  s_cmp_lt_u32 s84, {NST}")
    e(f"  s_cbranch_scc1 {Ll}")
    stamp(2)
    for mt in range(4):
        e(f"  v_sub_f32 v{40+mt}, 1.0, v{40+mt}")
        bf16_round(40+mt, 40+mt, 44)
    for mt in range(4):
        if mt: e(f"  v_add_u32 v34, {16*2048}, v34")
        for j in range(4):
            a = ACC + (j*4+mt)*4
            e(f"  v_cvt_pk_bf16_f32 v44, v{a}, v{a+1}")
            e(f"  v_cvt_pk_bf16_f32 v45, v{a+2}, v{a+3}")
            for i, (src, hi) in enumerate(((44,0),(44,1),(45,0),(45,1))):
                if hi: e(f"  v_and_b32 v{46+i}, 0xffff0000, v{src}")
                else:  e(f"  v_lshlrev_b32 v{46+i}, 16, v{src}")
            for i in range(4): e(f"  v_mul_f32 v{46+i}, v{46+i}, v{40+mt}")
            t = 50 + (j % 4)*2
            e(f"  v_cvt_pk_bf16_f32 v{t}, v46, v47")
            e(f"  v_cvt_pk_bf16_f32 v{t+1}, v48, v49")
            e(f"  buffer_store_dwordx2 {vr(t,2)}, v34, s[52:55], 0 offen offset:{j*32} sc0 sc1")
    srd(48, P_DBG, 256)
    e("  s_lshr_b32 s74, s60, 1")
    e("  s_lshl_b32 s74, s74, 2")
    e("  s_and_b32 s75, s60, 1")
    e("  s_lshl_b32 s75, 1, s75")
    e("  s_waitcnt vmcnt(0)")
    e("  s_barrier")
    e("  s_cmp_lg_u32 s56, 0")
    e(f"  s_cbranch_scc1 K2_A_done")
    e("  s_mov_b64 exec, 1")
    e("  v_mov_b32 v20, s75")
    e("  v_mov_b32 v21, 0")
    e("  buffer_atomic_or v20, v21, s[48:51], s74 offen sc1")
    e("  s_mov_b64 exec, -1")
    e("K2_A_done:")
    stamp(3)
    stamp_flush(1, 4)
    e(f"  s_branch {Lend}")

    e(f"{LB}:")
    NB = 3; ST = 49152; D = 12; NST = 32
    V_DA = 8; V_DW = 12; V_RW0, V_RW1 = 24, 25
    srd(40, P_WS, SZ_H, WS_HHI)
    srd(48, P_WS, SZ_H, WS_HLO)
    srd(44, P_CRE, 1024*2048)
    e("  s_lshl_b32 s73, s57, 19")
    e("  s_lshl_b32 s75, s58, 18")
    for j in range(4):
        e(f"  s_lshl_b32 s74, s56, 8")
        e(f"  s_add_u32 s74, s74, {j*64}")
        e(f"  v_add_u32 v32, s74, v1")
        e(f"  v_lshrrev_b32 v33, 3, v32")
        e(f"  v_and_b32 v34, 7, v32")
        e(f"  v_and_b32 v35, 7, v33")
        e(f"  v_xor_b32 v34, v34, v35")
        e(f"  v_lshlrev_b32 v34, 4, v34")
        e(f"  v_lshl_add_u32 v35, v33, 7, v34")
        e(f"  v_add_u32 v{V_DA+j}, s73, v35")
        e(f"  v_lshl_add_u32 v35, v33, 11, v34")
        e(f"  v_add_u32 v{V_DW+j}, s75, v35")
    e("  s_lshl_b32 s74, s88, 13")
    e("  s_add_u32 s74, s74, 32768")
    e(f"  v_add_u32 v{V_RW0}, s74, v31")
    e(f"  v_xor_b32 v{V_RW1}, 64, v{V_RW0}")
    V_PA, V_PB, V_DUM = 28, 29, 30
    e("  s_and_b32 s77, s56, 1")
    e("  s_lshl_b32 s77, s77, 6")
    e("  v_add_u32 v32, s77, v1")
    e("  v_lshlrev_b32 v33, 12, v32")
    e(f"  v_add_u32 v{V_PA}, s73, v33")
    e("  v_lshlrev_b32 v33, 11, v32")
    e(f"  v_add_u32 v{V_PB}, s75, v33")
    e("  s_cmp_lt_u32 s56, 2")
    e("  s_cselect_b32 s96, s40, s48")
    e("  s_cselect_b32 s97, s41, s49")
    e("  s_mov_b32 s98, s42")
    e("  s_mov_b32 s99, 0x00020000")
    srd(92, P_CRE, 1024*2048)
    PFB = 0
    e(f"  s_mov_b32 s89, {NB*128}")
    e(f"  s_mov_b32 s90, {NB*128}")
    e(f"  s_mov_b32 s91, {NB}")
    def pfB():
        return [f"buffer_load_dword v{V_DUM}, v{V_PA}, s[96:99], s89 offen",
                f"buffer_load_dword v{V_DUM}, v{V_PB}, s[92:95], s90 offen",
                ["s_add_u32 s89, s89, 128", "s_add_u32 s90, s90, 128", "s_add_u32 s91, s91, 1"],
                ["s_cmp_eq_u32 s91, 16", f"s_cselect_b32 s92, s{P_CIM}, s92", f"s_cselect_b32 s93, s{P_CIM+1}, s93", "s_cselect_b32 s90, 0, s90"]]
    def EARLY_B():
        srd(52, P_WS, SZ_G, WS_G)
        e("  s_lshl_b32 s74, s57, 7")
        e("  s_lshl_b32 s77, s87, 6")
        e("  s_add_u32 s74, s74, s77")
        e("  v_add_u32 v32, s74, v3")
        e("  v_lshlrev_b32 v33, 2, v32")
        for mt in range(4):
            e(f"  buffer_load_dword v{40+mt}, v33, s[52:55], 0 offen offset:{mt*64}")
        srd(52, P_DSK, 2048)
        e("  s_lshl_b32 s74, s58, 8")
        e("  s_lshl_b32 s77, s88, 7")
        e("  s_add_u32 s74, s74, s77")
        e("  v_lshl_add_u32 v35, v4, 3, s74")
        for j in range(4):
            e(f"  buffer_load_dwordx2 v[{44+2*j}:{45+2*j}], v35, s[52:55], 0 offen offset:{j*32}")
        e("  v_lshl_add_u32 v36, v32, 11, v35")
        srd(52, P_X, 2048*2048)
        for mt in range(4):
            for j in range(4):
                r = 224 + (mt*4+j)*2
                e(f"  s_mov_b32 s74, {mt*16*2048}")
                e(f"  buffer_load_dwordx2 v[{r}:{r+1}], v36, s[52:55], s74 offen offset:{j*32}")
    def dmaB0():
        f = []
        for j in range(4):
            f.append([f"s_add_u32 s79, s62, s70", f"s_add_u32 m0, s79, {j*1024}"] if j == 0 else [f"s_add_u32 m0, s79, {j*1024}"])
            f.append(f"buffer_load_dwordx4 v{V_DA+j}, s[40:43], s63 offen lds")
        for j in range(2):
            f.append(f"s_add_u32 m0, s79, {16384+j*1024}")
            f.append(f"buffer_load_dwordx4 v{V_DA+j}, s[48:51], s63 offen lds")
        return f
    def dmaB():
        f = []
        for j in range(2, 4):
            f.append(f"s_add_u32 m0, s79, {16384+j*1024}")
            f.append(f"buffer_load_dwordx4 v{V_DA+j}, s[48:51], s63 offen lds")
        for j in range(4):
            f.append(f"s_add_u32 m0, s79, {32768+j*1024}")
            f.append(f"buffer_load_dwordx4 v{V_DW+j}, s[44:47], s64 offen lds")
        f.append(["s_add_u32 s63, s63, 16384", "s_add_u32 s64, s64, 128", "s_add_u32 s65, s65, 1"])
        f.append([f"s_add_u32 s62, s62, {ST}", f"s_cmp_ge_u32 s62, {NB*ST}", "s_cselect_b32 s62, 0, s62"])
        f.append(["s_cmp_eq_u32 s65, 16", f"s_cselect_b32 s44, s{P_CIM}, s44", f"s_cselect_b32 s45, s{P_CIM+1}, s45", "s_cselect_b32 s64, 0, s64"])
        f.append([f"s_cmp_ge_u32 s65, {NST}", "s_cselect_b32 s42, 0, s42", "s_cselect_b32 s46, 0, s46", "s_cselect_b32 s50, 0, s50"])
        return f
    def b_reads(st, u):
        va = V_RA1 if u else V_RA0; vw = V_RW1 if u else V_RW0
        b = FR + st*48
        r = [f"ds_read_b128 {vr(b+32+j*4)}, v{vw} offset:{j*2048}" for j in range(4)]
        r += [f"ds_read_b128 {vr(b+mt*4)}, v{va} offset:{mt*2048}" for mt in range(4)]
        r += [f"ds_read_b128 {vr(b+16+mt*4)}, v{va} offset:{16384+mt*2048}" for mt in range(4)]
        return r
    def b_mfmas(st):
        b = FR + st*48
        m = []
        for hl in range(2):
            for j in range(4):
                for mt in range(4):
                    acc = vr(ACC+(j*4+mt)*4)
                    m.append(f"v_mfma_f32_16x16x32_bf16 {acc}, {vr(b+32+j*4)}, {vr(b+hl*16+mt*4)}, {acc}")
        return m
    def advB():
        return [["s_add_u32 s71, s71, 1", f"s_cmp_ge_u32 s71, {NB}", f"s_mov_b32 s72, {ST}", f"s_cselect_b32 s72, {-(NB-1)*ST & 0xffffffff}, s72", "s_cselect_b32 s71, 0, s71"]] + \
               [f"v_add_u32 v{x}, s72, v{x}" for x in (V_RA0, V_RA1, V_RW0, V_RW1)]
    for s in range(NB-1): flat(dmaB0() + dmaB())
    flat(dmaB0())
    EARLY_B()
    e(f"  s_waitcnt vmcnt({(NB-2)*D + D//2 + 24})")
    e("  s_barrier")
    stamp(1)
    flat(b_reads(0, 0))
    e("  s_mov_b32 s84, 0")
    Ll = Lbl.new("K2_B")
    e(f"{Ll}:")
    e("  s_waitcnt lgkmcnt(0)")
    interleave(b_mfmas(0), mix(b_reads(1, 1), dmaB()), 0.9)
    e(f"  s_waitcnt vmcnt({(NB-2)*D}) lgkmcnt(0)")
    e("  s_barrier")
    interleave(b_mfmas(1), advB() + mix(b_reads(0, 0), dmaB0()), 0.9)
    e("  s_add_u32 s84, s84, 1")
    e(f"  s_cmp_lt_u32 s84, {NST}")
    e(f"  s_cbranch_scc1 {Ll}")
    stamp(2)
    for j in range(4):
        for i in range(4):
            src = 44+2*j+(i >> 1)
            if i & 1: e(f"  v_and_b32 v{192+j*4+i}, 0xffff0000, v{src}")
            else:     e(f"  v_lshlrev_b32 v{192+j*4+i}, 16, v{src}")
    for mt in range(4):
        for j in range(4):
            a = ACC + (j*4+mt)*4; xr = 224 + (mt*4+j)*2
            for i in range(4):
                src = xr + (i >> 1)
                if i & 1: e(f"  v_and_b32 v{52+i}, 0xffff0000, v{src}")
                else:     e(f"  v_lshlrev_b32 v{52+i}, 16, v{src}")
            e(f"  v_pk_mul_f32 v[52:53], v[52:53], v[{192+j*4}:{193+j*4}]")
            e(f"  v_pk_mul_f32 v[54:55], v[54:55], v[{194+j*4}:{195+j*4}]")
            e(f"  v_cvt_pk_bf16_f32 v56, v52, v53")
            e(f"  v_cvt_pk_bf16_f32 v57, v54, v55")
            for i, (src, hi) in enumerate(((56,0),(56,1),(57,0),(57,1))):
                if hi: e(f"  v_and_b32 v{52+i}, 0xffff0000, v{src}")
                else:  e(f"  v_lshlrev_b32 v{52+i}, 16, v{src}")
            for i in range(4): e(f"  v_fma_f32 v{a+i}, 2.0, v{a+i}, v{52+i}")
            for i in range(4): e(f"  v_mul_f32 v{a+i}, v{a+i}, v{40+mt}")
    srd(48, P_DBG, 256)
    srd(52, P_WS, SZ_T, WS_T)
    e("  s_lshr_b32 s74, s60, 1")
    e("  s_lshl_b32 s74, s74, 2")
    e("  s_and_b32 s75, s60, 1")
    e("  s_lshl_b32 s75, 1, s75")
    e("  s_mov_b32 s78, 0")
    e("  v_mov_b32 v37, 0")
    Lp = Lbl.new("K2_poll"); Lg = Lbl.new("K2_got")
    e(f"{Lp}:")
    e("  buffer_load_dword v38, v37, s[48:51], s74 offen sc1")
    e("  s_waitcnt vmcnt(0)")
    e("  v_readfirstlane_b32 s79, v38")
    e("  s_add_u32 s78, s78, 1")
    e("  s_and_b32 s79, s79, s75")
    e(f"  s_cbranch_scc1 {Lg}")
    e("  s_cmp_gt_u32 s78, 0x100000")
    e(f"  s_cbranch_scc1 {Lg}")
    e("  s_sleep 1")
    e(f"  s_branch {Lp}")
    e(f"{Lg}:")
    stamp(3)
    for mt in range(4):
        for j in range(4):
            r = 160 + (mt*4+j)*2
            e(f"  s_mov_b32 s74, {mt*16*2048}")
            e(f"  buffer_load_dwordx2 v[{r}:{r+1}], v36, s[52:55], s74 offen offset:{j*32} sc0 sc1")
    srd(48, P_OUT, 2048*1024*4)
    e("  v_lshlrev_b32 v36, 1, v36")
    for mt in range(4):
        for j in range(4):
            a = ACC + (j*4+mt)*4; tr = 160 + (mt*4+j)*2
            e(f"  s_waitcnt vmcnt({15 - (mt*4+j) + (mt*4+j)})") if False else None
            e(f"  s_waitcnt vmcnt({15})") if (mt*4+j) == 0 else None
            for i in range(4):
                src = tr + (i >> 1)
                if i & 1: e(f"  v_and_b32 v{56+i}, 0xffff0000, v{src}")
                else:     e(f"  v_lshlrev_b32 v{56+i}, 16, v{src}")
            e(f"  v_pk_add_f32 v[{a}:{a+1}], v[{a}:{a+1}], v[56:57]")
            e(f"  v_pk_add_f32 v[{a+2}:{a+3}], v[{a+2}:{a+3}], v[58:59]")
            e(f"  s_mov_b32 s74, {mt*16*4096}")
            e(f"  buffer_store_dwordx4 {vr(a)}, v36, s[48:51], s74 offen offset:{j*64}{WT2}")
            if (mt*4+j) < 15: e(f"  s_waitcnt vmcnt(15)")
    if PROF: e("  s_waitcnt vmcnt(0)")
    stamp(4)
    stamp_flush(1, 5)
    e(f"{Lend}:")
    e("  s_endpgm")

def desc(name, vgpr, accum):
    e(f".amdhsa_kernel {name}")
    e(f"  .amdhsa_next_free_vgpr {vgpr}")
    e("  .amdhsa_next_free_sgpr 102")
    e(f"  .amdhsa_accum_offset {accum}")
    e("  .amdhsa_group_segment_fixed_size 0")
    e("  .amdhsa_kernarg_size 136")
    e("  .amdhsa_user_sgpr_count 2")
    e("  .amdhsa_user_sgpr_kernarg_segment_ptr 1")
    e("  .amdhsa_system_sgpr_workgroup_id_x 1")
    e(".end_amdhsa_kernel")

def main():
    hdr = open("gated_mix__ssm_conv_s5__glu_gated_swiglu__prompt.s.ref").read().split("\n")
    for l in hdr:
        if l.startswith("; @launch"): break
        e(l)
    e("; @launch kernel=gm_phase1_kernel grid=(256,1,1) block=(256,1,1) lds=139264")
    e("; @launch kernel=gm_phase2_kernel grid=(256,1,1) block=(256,1,1) lds=163840")
    e('.amdgcn_target "amdgcn-amd-amdhsa--gfx950"')
    e(".text")
    kernel1()
    kernel2()
    e('.section .rodata,"a"')
    e(".p2align 6")
    desc("gm_phase1_kernel", 512, 256)
    e(".p2align 6")
    desc("gm_phase2_kernel", 256, 256)
    open(sys.argv[1] if len(sys.argv) > 1 else "gated_mix__ssm_conv_s5__glu_gated_swiglu__prompt.s", "w").write("\n".join(OUT) + "\n")

main()
```
